```python
import torch

def _softmax(x, axis=-1):
    return torch.softmax(x, dim=axis)
def _gelu(x):
    return torch.nn.functional.gelu(x, approximate="tanh")
def _silu(x):
    return torch.nn.functional.silu(x)
def _sigmoid(x):
    return torch.sigmoid(x)
def _layernorm(x, axis=-1, eps=1e-5):
    m = x.mean(dim=axis, keepdim=True)
    v = x.var(dim=axis, keepdim=True, unbiased=False)
    return (x - m) / torch.sqrt(v + eps)
def _scatter_add(tgt, idx, src, axis=0):
    return tgt.clone().index_add_(axis, idx, src)
def _segment_sum(src, seg, n):
    out = torch.zeros((n,) + src.shape[1:], dtype=src.dtype)
    return out.index_add_(0, seg, src)
def _pad(x, pw):
    flat = tuple(v for pair in reversed(pw) for v in pair)
    return torch.nn.functional.pad(x, flat)

kernel_name = 'parallel_sum__gqa_block_cached__dense_activation_silu__decode'

def setup_inputs():

    _w = (lambda a: (lambda t: t.to(torch.bfloat16) if t.is_floating_point() else t)(torch.as_tensor(a)))
    def _A_setup():
        B, Sq, D = 1, 1, 576
        Hq, Hkv, Sk, Dh = 32, 16, 65536, 128
        assert Hq % Hkv == 0, (Hq, Hkv)
        return {
            "x": _w((lambda *s: torch.randn(*s, dtype=torch.bfloat16) * 0.05)(B, Sq, D)),
            "k_cache": _w((lambda *s: torch.randn(*s, dtype=torch.bfloat16) * 3.2)(B, Hkv, Sk, Dh)),
            "v_cache": _w((lambda *s: torch.randn(*s, dtype=torch.bfloat16) * 0.8)(B, Hkv, Sk, Dh)),
            "wq": _w((lambda *s: torch.randn(*s, dtype=torch.bfloat16) * 3.2)(D, Hq * Dh) * (D ** -0.5)),
            "wo": _w((lambda *s: torch.randn(*s, dtype=torch.bfloat16) * 0.8)(Hq * Dh, D) * ((Hq * Dh) ** -0.5)),
        }
    _A_in = _A_setup()

    def _B_setup():
        B, S, D, F = 1, 1, 576, 4608
        return {
            "x": _w((lambda *s: torch.randn(*s, dtype=torch.bfloat16) * 0.05)(B, S, D)),
            "w1": _w((lambda *s: torch.randn(*s, dtype=torch.bfloat16) * 3.2)(D, F) * (D ** -0.5)),
            "w2": _w((lambda *s: torch.randn(*s, dtype=torch.bfloat16) * 0.4)(F, D) * (F ** -0.5)),
        }
    _B_in = _B_setup()

    return {
        "A_x": _A_in["x"],
        "A_k_cache": _A_in["k_cache"],
        "A_v_cache": _A_in["v_cache"],
        "A_wq": _A_in["wq"],
        "A_wo": _A_in["wo"],
        "B_x": _B_in["x"],
        "B_w1": _B_in["w1"],
        "B_w2": _B_in["w2"],
    }

def reference(A_x, A_k_cache, A_v_cache, A_wq, A_wo, B_x, B_w1, B_w2):
    def _A_ref(x, k_cache, v_cache, wq, wo):
        B, Sq, D = x.shape
        Hq, Dh = 32, 128
        Hkv = k_cache.shape[1]
        rep = Hq // Hkv
        q = (lambda x, *d: x.permute(*d))((x @ wq).reshape(B, Sq, Hq, Dh), 0, 2, 1, 3)
        k = (lambda x, n, axis: torch.repeat_interleave(x, n, dim=axis))(k_cache, rep, axis=1)
        v = (lambda x, n, axis: torch.repeat_interleave(x, n, dim=axis))(v_cache, rep, axis=1)
        scores = torch.einsum("bhqd,bhkd->bhqk", q, k) * (Dh ** -0.5)
        p = _softmax(scores, axis=-1)
        o = torch.einsum("bhqk,bhkd->bhqd", p, v)
        return (lambda x, *d: x.permute(*d))(o, 0, 2, 1, 3).reshape(B, Sq, Hq * Dh) @ wo

    def _B_ref(x, w1, w2):
        h = torch.einsum("bsd,df->bsf", x, w1)
        h = _silu(h)
        out = torch.einsum("bsf,fd->bsd", h, w2)
        return out

    x = A_x
    xn = _layernorm(x, axis=-1)
    return x + _A_ref(xn, A_k_cache, A_v_cache, A_wq, A_wo) + _B_ref(xn, B_w1, B_w2)
```

```python
class Asm:
    def __init__(self):
        self.L = []
        self.uid = 0
    def __call__(self, s):
        for ln in s.split("\n"):
            ln = ln.strip()
            if ln:
                self.L.append("  " + ln)
    def label(self, n):
        self.L.append(f"{n}:")
    def comment(self, s):
        self.L.append(f"  ; {s}")
    def raw(self, s):
        self.L.append(s)
    def newlabel(self, p="L"):
        self.uid += 1
        return f"{p}_{self.uid}"
    def nop(self, n):
        while n > 0:
            k = min(n, 16)
            self(f"s_nop {k-1}")
            n -= k
    def text(self):
        return "\n".join(self.L) + "\n"

def vr(b, n=1):
    return f"v{b}" if n == 1 else f"v[{b}:{b+n-1}]"
def sr(b, n=1):
    return f"s{b}" if n == 1 else f"s[{b}:{b+n-1}]"
```

```python
import sys
from asmlib import Asm, vr, sr

NAME = "parallel_sum__gqa_block_cached__dense_activation_silu__decode"
NWG = 256

LDS_X = 0
LDS_XN = 131072
LDS_Q = LDS_XN + 1280
LDS_H = LDS_Q + 512
LDS_PROG = LDS_H + 128
LDS_TOTAL = 133120

WS_E = 0
WS_QP = 0x1000
WS_ML = 0x40000
WS_OP = 0x100000
WS_AP = 0x400000
WS_BP = 0x600000
WS_DIAG = 0x680000
WS_SIZE = 0x700000

SCALE = 0x3DB504F3
LOG2E = 0x3FB8AA3B
NEG_INF = 0xFF800000

class Cfg:
    D = 6
    MULT = 677
    STAMPS = False
    KFLAGS = "nt"
    VFLAGS = "nt"
    WFLAGS = "nt"
    SPIN_MAX = 200000
    TOUCH = True
    PREBAR = 48

def srd(a, dst, lo, hi, size):
    a(f"s_mov_b32 s{dst}, s{lo}")
    a(f"s_and_b32 s{dst+1}, s{hi}, 0xffff")
    a(f"s_mov_b32 s{dst+2}, {size}")
    a(f"s_mov_b32 s{dst+3}, 0x20000")

def allreduce(a, op, regs, tmps, rors=(8, 4, 2, 1), cross=True):
    n = len(regs)
    for k in rors:
        a.nop(max(0, 2 - (n - 1)))
        for r in regs:
            a(f"{op}_dpp v{r}, v{r}, v{r} row_ror:{k} row_mask:0xf bank_mask:0xf")
    if cross:
        for sw in ("v_permlane16_swap_b32", "v_permlane32_swap_b32"):
            for r, t in zip(regs, tmps):
                a(f"v_mov_b32 v{t}, v{r}")
            a.nop(2)
            for r, t in zip(regs, tmps):
                a(f"{sw} v{r}, v{t}")
            a.nop(1)
            for r, t in zip(regs, tmps):
                a(f"{op} v{r}, v{r}, v{t}")

class Stamps:
    def __init__(self, a, on):
        self.a = a; self.on = on
    def mark(self, i):
        if self.on:
            self.a(f"s_memrealtime s[{64+2*i}:{65+2*i}]")
    def init(self):
        if self.on:
            for i in range(16):
                self.a(f"s_mov_b64 s[{64+2*i}:{65+2*i}], 0")
    def dump(self):
        if not self.on: return
        a = self.a
        a("s_waitcnt lgkmcnt(0)")
        a("s_lshl_b32 s62, s2, 3"); a("s_add_u32 s62, s62, s3"); a("s_lshl_b32 s62, s62, 7"); a(f"s_add_u32 s62, s62, {WS_DIAG}")
        a("s_mov_b64 exec, 1")
        a("v_mov_b32 v250, 0")
        for i in range(0, 16, 2):
            for k in range(4):
                a(f"v_mov_b32 v{252+k}, s{64+2*i+k}")
            a(f"buffer_store_dwordx4 v[252:255], v250, s[28:31], s62 offen offset:{i*8}")
            a("s_nop 1")
        a("s_waitcnt vmcnt(0)")
        a("s_mov_b64 exec, -1")

def spin_guard(a, cnt_s, fail_label):
    a(f"s_sub_u32 s{cnt_s}, s{cnt_s}, 1")
    a(f"s_cbranch_scc1 {fail_label}")

def gen(cfg):
    a = Asm()
    st = Stamps(a, cfg.STAMPS)
    D = cfg.D
    a.raw(f"; @launch grid=({NWG},1,1) block=(512,1,1) lds={LDS_TOTAL}")
    a.raw('.amdgcn_target "amdgcn-amd-amdhsa--gfx950"')
    a.raw(".text")
    a.raw(f".globl {NAME}_kernel")
    a.raw(".p2align 8")
    a.raw(f".type {NAME}_kernel,@function")
    a.label(f"{NAME}_kernel")
    a(f"s_cmp_ge_u32 s2, {NWG}")
    a("s_cbranch_scc1 L_end")
    st.init()
    st.mark(0)
    a("s_load_dwordx16 s[4:19], s[0:1], 0")
    a("s_load_dwordx2 s[20:21], s[0:1], 64")
    a("s_load_dwordx2 s[22:23], s[0:1], 80")
    a("v_lshrrev_b32 v1, 6, v0")
    a("v_and_b32 v0, 63, v0")
    a("v_readfirstlane_b32 s3, v1")
    a("s_and_b32 s25, s2, 15")
    a("s_lshr_b32 s26, s2, 4")
    a("s_cmp_ge_u32 s3, 4")
    a("s_cbranch_scc1 L_helper")

    vK0, vK1, vV = 2, 3, 4
    vLds = 5
    vOadr, vMLadr = 6, 7
    RING = 64
    AQK = 128
    DA, DB, OO = 160, 164, 168
    APV = 172
    SEL = 180
    PK, BC, S0, S1 = 184, 185, 186, 187
    P0, Q0, P1, Q1 = 188, 189, 190, 191
    L0, L1 = 192, 193
    T0, T1, T2, T3, T4, T5 = 194, 195, 196, 197, 198, 199
    STG = 200
    PK1, U0, U1 = 232, 233, 234
    sKoff, sVoff, sM0, sM1 = 40, 41, 42, 43
    sLo, sHi = 44, 46
    sCnt, sStride, sLdsB, sU = 48, 49, 50, 51
    HT = 8192
    stride = (64 * cfg.MULT * HT) % (1 << 24)
    MASK = (1 << 24) - 1

    a(f"v_and_b32 v8, 7, v0")
    a(f"v_lshlrev_b32 v{vK0}, 8, v8")
    a(f"v_bfe_u32 v8, v0, 3, 1")
    a(f"v_lshl_add_u32 v{vK0}, v8, 6, v{vK0}")
    a(f"v_lshrrev_b32 v9, 4, v0")
    a(f"v_lshl_add_u32 v{vK0}, v9, 4, v{vK0}")
    a(f"v_add_u32 v{vK1}, 4096, v{vK0}")
    a(f"v_lshlrev_b32 v{vV}, 11, v9")
    a(f"v_and_b32 v8, 15, v0")
    a(f"v_lshl_add_u32 v{vV}, v8, 4, v{vV}")
    a(f"s_lshl_b32 s{sU}, s26, 2"); a(f"s_add_u32 s{sU}, s{sU}, s3")
    a(f"s_mul_i32 s{sKoff}, s{sU}, {(cfg.MULT * HT) % (1 << 32)}")
    a(f"s_and_b32 s{sKoff}, s{sKoff}, {MASK}")
    a(f"s_mov_b32 s{sVoff}, s{sKoff}")
    a(f"s_lshl_b32 s{sLdsB}, s3, 15")
    a(f"s_lshl_b32 s52, s25, 24")
    a("s_waitcnt lgkmcnt(0)")
    a("s_add_u32 s32, s6, s52"); a("s_addc_u32 s33, s7, 0"); a("s_and_b32 s33, s33, 0xffff"); a(f"s_mov_b32 s34, {1<<24}"); a("s_mov_b32 s35, 0x20000")
    a("s_add_u32 s36, s8, s52"); a("s_addc_u32 s37, s9, 0"); a("s_and_b32 s37, s37, 0xffff"); a(f"s_mov_b32 s38, {1<<24}"); a("s_mov_b32 s39, 0x20000")

    def adv_k():
        a(f"s_add_u32 s{sKoff}, s{sKoff}, {stride}"); a(f"s_and_b32 s{sKoff}, s{sKoff}, {MASK}")
    def adv_v():
        a(f"s_add_u32 s{sVoff}, s{sVoff}, {stride}"); a(f"s_and_b32 s{sVoff}, s{sVoff}, {MASK}")

    def load_params(i):
        if i < 16:
            t = (i >> 1) & 3; c = i & 1
            return ("K", vK0 if t < 2 else vK1, (t & 1) * 2048 + c * 128)
        n = i - 16
        return ("V", vV, (n & 7) * 256)

    def issue(I, lds=False, last_round_guard=False):
        i = I % 32
        kind, vo, io = load_params(i)
        if i == 0 and I > 0:
            adv_k()
            if last_round_guard:
                a(f"s_cmp_eq_u32 s{sCnt}, 1"); a("s_cselect_b32 s34, 0, s34")
        if i == 8: adv_k()
        if i == 16 and I > 16: adv_v()
        if i == 24: adv_v()
        srdr = "s[32:35]" if kind == "K" else "s[36:39]"
        so = sKoff if kind == "K" else sVoff
        fl = cfg.KFLAGS if kind == "K" else cfg.VFLAGS
        if lds:
            a(f"s_add_u32 m0, s{sLdsB}, {1024 * I - io}")
            a("s_nop 0")
            a(f"buffer_load_dwordx4 v{vo}, {srdr}, s{so} offen offset:{io} {fl} lds")
        else:
            r = RING + (I % 16) * 4
            a(f"buffer_load_dwordx4 {vr(r,4)}, v{vo}, {srdr}, s{so} offen offset:{io} {fl}")

    PRE = cfg.PREBAR
    assert PRE == 48
    for I in range(PRE):
        if I >= D:
            a(f"s_waitcnt vmcnt({D-1})")
            if I == D: st.mark(1)
        issue(I, lds=(I < 32))
        if I == D - 1:
            a(f"s_load_dword s24, s[22:23], {WS_E}")
            srd(a, 28, 22, 23, WS_SIZE)
            a(f"v_lshlrev_b32 v{vLds}, 4, v0"); a(f"v_add_u32 v{vLds}, s{sLdsB}, v{vLds}")
            a(f"s_mov_b32 s{sLo}, 0x00ff00ff"); a(f"s_mov_b32 s{sLo+1}, 0x00ff00ff")
            a(f"s_mov_b32 s{sHi}, 0"); a(f"s_mov_b32 s{sHi+1}, -1")
            pv_selectors(a, SEL, mode="pv", t=(8, 9, 10, 11))
            a("v_lshrrev_b32 v8, 5, v0"); a("v_lshlrev_b32 v8, 3, v8")
            a("v_bfe_u32 v9, v0, 1, 3"); a("v_add_u32 v8, v8, v9")
            a("v_lshlrev_b32 v8, 13, v8")
            a("v_and_b32 v9, 1, v0"); a("v_lshlrev_b32 v9, 5, v9")
            a("v_bfe_u32 v10, v0, 4, 1"); a("v_lshl_add_u32 v9, v10, 4, v9")
            a("v_add_u32 v8, v8, v9")
            a(f"s_lshl_b32 s53, s25, 17"); a(f"s_lshl_b32 s54, s{sU}, 7"); a("s_add_u32 s53, s53, s54"); a(f"s_add_u32 s53, s53, {WS_OP}")
            a(f"v_add_u32 v{vOadr}, s53, v8")
            a("v_lshrrev_b32 v8, 5, v0"); a("v_lshlrev_b32 v8, 10, v8")
            a(f"s_lshl_b32 s53, s25, 11"); a(f"s_lshl_b32 s54, s{sU}, 4"); a("s_add_u32 s53, s53, s54"); a(f"s_add_u32 s53, s53, {WS_ML}")
            a(f"v_add_u32 v{vMLadr}, s53, v8")
            for r in range(4): a(f"v_mov_b32 v{OO+r}, 0")
            a(f"v_mov_b32 v{L0}, 0"); a(f"v_mov_b32 v{L1}, 0")
            a(f"s_mov_b32 s{sM0}, {NEG_INF:#x}"); a(f"s_mov_b32 s{sM1}, {NEG_INF:#x}")
    st.mark(2)
    a("s_waitcnt lgkmcnt(0)")
    a("s_add_u32 s24, s24, 1")
    a("s_barrier")
    st.mark(3)
    a("v_bfe_u32 v8, v0, 1, 1"); a("v_lshlrev_b32 v8, 8, v8")
    a("v_and_b32 v9, 1, v0"); a("v_lshl_add_u32 v8, v9, 6, v8")
    a("v_lshrrev_b32 v9, 4, v0"); a("v_lshl_add_u32 v8, v9, 4, v8")
    a(f"v_add_u32 v8, {LDS_Q}, v8")
    a(f"ds_read_b128 v[12:15], v8"); a(f"ds_read_b128 v[16:19], v8 offset:128")
    for t in range(4):
        m = 0x000F000F << (4 * t)
        a(f"s_mov_b32 s{54}, {m:#x}"); a(f"s_mov_b32 s{55}, {m:#x}")
        if t == 0: a("s_waitcnt lgkmcnt(0)")
        for c in range(2):
            for d in range(4):
                a(f"v_cndmask_b32 v{AQK + (t*2+c)*4 + d}, 0, v{12 + 4*c + d}, s[54:55]")

    def mfma_k(i, breg, first):
        t = (i >> 1) & 3; c = i & 1
        dst = DA if i < 8 else DB
        A = AQK + (t * 2 + c) * 4
        cin = "0" if first else vr(dst, 4)
        a(f"v_mfma_f32_16x16x32_bf16 {vr(dst,4)}, {vr(A,4)}, {vr(breg,4)}, {cin}")

    def score_a(s0, s1):
        a(f"v_cndmask_b32 v{P0}, v{DB+1}, v{DA+0}, s[{sLo}:{sLo+1}]")
        a(f"v_cndmask_b32 v{Q0}, v{DA+1}, v{DB+0}, s[{sLo}:{sLo+1}]")
        a(f"v_cndmask_b32 v{Q1}, v{DA+3}, v{DB+2}, s[{sLo}:{sLo+1}]")
        a(f"v_cndmask_b32 v{P1}, v{DB+3}, v{DA+2}, s[{sLo}:{sLo+1}]")
        a(f"v_add_f32_dpp v{s0}, v{Q0}, v{P0} row_ror:8 row_mask:0xf bank_mask:0xf")
        a("s_nop 0")
        a(f"v_add_f32_dpp v{s1}, v{Q1}, v{P1} row_ror:8 row_mask:0xf bank_mask:0xf")
        a(f"v_cvt_pk_bf16_f32 v{T0}, v{s0}, v{s1}")
        a(f"v_lshlrev_b32 v{s0}, 16, v{T0}")
        a(f"v_and_b32 v{s1}, 0xffff0000, v{T0}")
        a(f"v_mul_f32 v{s0}, {SCALE:#x}, v{s0}")
        a(f"v_mul_f32 v{s1}, {SCALE:#x}, v{s1}")
        a(f"v_cvt_pk_bf16_f32 v{T0}, v{s0}, v{s1}")
        a(f"v_lshlrev_b32 v{s0}, 16, v{T0}")
        a(f"v_and_b32 v{s1}, 0xffff0000, v{T0}")

    def max_update(x0, x1):
        a(f"v_mov_b32 v{T0}, v{x0}"); a(f"v_mov_b32 v{T1}, v{x1}")
        allreduce(a, "v_max_f32", [T0, T1], [T2, T3])
        a(f"v_max_f32 v{T0}, s{sM0}, v{T0}"); a(f"v_max_f32 v{T1}, s{sM1}, v{T1}")
        a(f"v_sub_f32 v{T2}, s{sM0}, v{T0}"); a(f"v_sub_f32 v{T3}, s{sM1}, v{T1}")
        a(f"v_readfirstlane_b32 s{sM0}, v{T0}"); a(f"v_readfirstlane_b32 s{sM1}, v{T1}")
        a(f"v_mul_f32 v{T2}, {LOG2E:#x}, v{T2}"); a(f"v_mul_f32 v{T3}, {LOG2E:#x}, v{T3}")
        a(f"v_exp_f32 v{T2}, v{T2}"); a(f"v_exp_f32 v{T3}, v{T3}")
        a("s_nop 0")
        a(f"v_mul_f32 v{L0}, v{L0}, v{T2}"); a(f"v_mul_f32 v{L1}, v{L1}, v{T3}")
        a(f"v_cndmask_b32 v{T4}, v{T2}, v{T3}, s[{sHi}:{sHi+1}]")
        for r in range(4): a(f"v_mul_f32 v{OO+r}, v{OO+r}, v{T4}")

    def exp_b(s0, s1, pk):
        a(f"v_subrev_f32 v{s0}, s{sM0}, v{s0}"); a(f"v_subrev_f32 v{s1}, s{sM1}, v{s1}")
        a(f"v_mul_f32 v{s0}, {LOG2E:#x}, v{s0}"); a(f"v_mul_f32 v{s1}, {LOG2E:#x}, v{s1}")
        a(f"v_exp_f32 v{s0}, v{s0}"); a(f"v_exp_f32 v{s1}, v{s1}")
        a("s_nop 0")
        a(f"v_add_f32 v{L0}, v{L0}, v{s0}"); a(f"v_add_f32 v{L1}, v{L1}, v{s1}")
        a(f"v_cvt_pk_bf16_f32 v{pk}, v{s0}, v{s1}")

    def prep_v(n, pk):
        a(f"v_mov_b32_dpp v{BC}, v{pk} row_newbcast:{n} row_mask:0xf bank_mask:0xf")
        for d in range(4):
            a(f"v_perm_b32 v{APV+d}, v{BC}, v{BC}, v{SEL+d}")

    def mfma_v(breg):
        a(f"v_mfma_f32_16x16x32_bf16 {vr(OO,4)}, {vr(APV,4)}, {vr(breg,4)}, {vr(OO,4)}")

    issued = PRE
    arrived = PRE - D
    def need(idx):
        nonlocal arrived
        if idx >= arrived:
            n_after = issued - 1 - idx
            a(f"s_waitcnt vmcnt({n_after})")
            arrived = idx + 1
    def step_issue():
        nonlocal issued, arrived
        tgt = issued - D
        if tgt >= arrived:
            a(f"s_waitcnt vmcnt({D-1})")
            arrived = tgt + 1
        issue(issued)
        issued += 1
    freed = set()
    work = []
    def w_k1(i):
        return (24, lambda: mfma_k(i, RING + ((32 + i) % 16) * 4, i in (0, 8)), 32 + i, 32 + i)
    work += [w_k1(i) for i in range(16)]
    def sa1():
        a.nop(8); score_a(U0, U1)
    work.append((110, sa1, None, None))
    def k0_batch(bt):
        def f():
            for k in range(8):
                a(f"ds_read_b128 {vr(STG + 4*k, 4)}, v{vLds} offset:{1024 * (8*bt + k)}")
            for k in range(8):
                a(f"s_waitcnt lgkmcnt({7-k})")
                mfma_k(8*bt + k, STG + 4*k, (8*bt + k) in (0, 8))
        return f
    work.append((260, k0_batch(0), None, None))
    work.append((260, k0_batch(1), None, None))
    def sa0():
        a.nop(8); score_a(S0, S1)
    work.append((110, sa0, None, None))
    def mx():
        a(f"v_max_f32 v{P0}, v{S0}, v{U0}"); a(f"v_max_f32 v{P1}, v{S1}, v{U1}")
        max_update(P0, P1)
    work.append((230, mx, None, None))
    def eb():
        a.nop(1)
        exp_b(S0, S1, PK); exp_b(U0, U1, PK1)
    work.append((110, eb, None, None))
    def v0_batch(bt):
        def f():
            for k in range(4):
                a(f"ds_read_b128 {vr(STG + 4*k, 4)}, v{vLds} offset:{1024 * (16 + 4*bt + k)}")
            for k in range(4):
                prep_v(4*bt + k, PK)
                a(f"s_waitcnt lgkmcnt({3-k})")
                a("s_nop 0")
                mfma_v(STG + 4*k)
        return f
    for bt in range(4): work.append((260, v0_batch(bt), None, None))
    def w_v1(n):
        def f():
            pass
        return n
    BUDGET = 300
    wi = 0
    v1_next = 0
    target = 64 + D
    while issued < target or wi < len(work) or v1_next < 16:
        spent = 0
        while wi < len(work) and spent < BUDGET:
            cost, fn, idx, fr = work[wi]
            if idx is not None and idx >= arrived:
                if issued < target and (issued - 16) == idx:
                    need(idx)
                elif issued < target:
                    break
                else:
                    need(idx)
            fn(); spent += cost
            if fr is not None: freed.add(fr)
            wi += 1
        if wi >= len(work):
            while v1_next < 16 and spent < BUDGET and (48 + v1_next < arrived or issued >= target or (issued - 16) == 48 + v1_next):
                prep_v(v1_next, PK1)
                need(48 + v1_next)
                a("s_nop 1")
                mfma_v(RING + ((48 + v1_next) % 16) * 4)
                freed.add(48 + v1_next)
                v1_next += 1; spent += 60
        if issued < target:
            prev = issued - 16
            if prev >= 32 and prev not in freed:
                if wi < len(work):
                    continue_ok = True
                    while prev not in freed:
                        if wi < len(work):
                            cost, fn, idx, fr = work[wi]
                            if idx is not None: need(idx)
                            fn()
                            if fr is not None: freed.add(fr)
                            wi += 1
                        else:
                            prep_v(v1_next, PK1); need(48 + v1_next); a("s_nop 1")
                            mfma_v(RING + ((48 + v1_next) % 16) * 4); freed.add(48 + v1_next); v1_next += 1
                else:
                    while prev not in freed:
                        prep_v(v1_next, PK1); need(48 + v1_next); a("s_nop 1")
                        mfma_v(RING + ((48 + v1_next) % 16) * 4); freed.add(48 + v1_next); v1_next += 1
            step_issue()
    assert issued == target
    st.mark(4)
    a(f"s_mov_b32 s{sCnt}, 14")
    a.raw(".p2align 6")
    a.label("L_loop")
    for i in range(32):
        slot = RING + (i % 16) * 4
        if i >= 16:
            if i == 16: a("s_nop 1")
            prep_v(i - 16, PK)
        a(f"s_waitcnt vmcnt({D-1})")
        issue(64 + i + D if (i + D) < 32 else 96 + (i + D - 32), last_round_guard=True)
        if i < 16:
            mfma_k(i, slot, i in (0, 8))
        else:
            mfma_v(slot)
        if i == 15:
            a.nop(8)
            score_a(S0, S1)
            a(f"v_cmp_lt_f32 vcc, s{sM0}, v{S0}")
            a(f"v_cmp_lt_f32 s[54:55], s{sM1}, v{S1}")
            a("s_or_b64 vcc, vcc, s[54:55]")
            a("s_cbranch_scc1 L_rare")
            a.label("L_back")
            exp_b(S0, S1, PK)
            if cfg.TOUCH:
                a(f"v_mov_b32 v{T0}, s{sCnt}"); a(f"v_mov_b32 v{T1}, {LDS_PROG}")
                a(f"ds_write_b32 v{T1}, v{T0}")
    a(f"s_sub_u32 s{sCnt}, s{sCnt}, 1")
    a(f"s_cmp_lg_u32 s{sCnt}, 0")
    a("s_cbranch_scc1 L_loop")
    st.mark(5)
    a.nop(8)
    a(f"v_mov_b32 v{STG+0}, v{OO+0}"); a(f"v_mov_b32 v{STG+1}, s24"); a(f"v_mov_b32 v{STG+2}, v{OO+1}"); a(f"v_mov_b32 v{STG+3}, s24")
    a(f"v_mov_b32 v{STG+4}, v{OO+2}"); a(f"v_mov_b32 v{STG+5}, s24"); a(f"v_mov_b32 v{STG+6}, v{OO+3}"); a(f"v_mov_b32 v{STG+7}, s24")
    a(f"buffer_store_dwordx4 {vr(STG,4)}, v{vOadr}, s[28:31], 0 offen sc0 sc1")
    a(f"buffer_store_dwordx4 {vr(STG+4,4)}, v{vOadr}, s[28:31], 0 offen offset:64 sc0 sc1")
    allreduce(a, "v_add_f32", [L0, L1], [T2, T3])
    a(f"v_mov_b32 v{T0}, s{sM0}"); a(f"v_mov_b32 v{T1}, s{sM1}")
    a(f"v_cndmask_b32 v{STG+8}, v{T0}, v{T1}, s[{sHi}:{sHi+1}]")
    a(f"v_mov_b32 v{STG+9}, s24")
    a(f"v_cndmask_b32 v{STG+10}, v{L0}, v{L1}, s[{sHi}:{sHi+1}]")
    a(f"v_mov_b32 v{STG+11}, s24")
    a("s_mov_b32 exec_lo, 1"); a("s_mov_b32 exec_hi, 1")
    a(f"buffer_store_dwordx4 {vr(STG+8,4)}, v{vMLadr}, s[28:31], 0 offen sc0 sc1")
    a("s_mov_b64 exec, -1")
    st.mark(6)
    a("s_barrier")
    st.dump()
    a("s_endpgm")
    a.label("L_rare")
    max_update(S0, S1)
    a("s_nop 1")
    a("s_branch L_back")

    a.raw(".p2align 6")
    a.label("L_helper")
    a("s_waitcnt lgkmcnt(0)")
    a(f"s_load_dword s24, s[22:23], {WS_E}")
    srd(a, 28, 22, 23, WS_SIZE)
    a("s_cmp_eq_u32 s3, 4")
    a("s_cbranch_scc1 L_w4")
    if cfg.TOUCH:
        a("s_cmp_eq_u32 s3, 7")
        a("s_cbranch_scc0 L_not7")
        a("s_getpc_b64 s[32:33]")
        a.label("L_pc7")
        a(f"s_sub_u32 s32, s32, L_pc7-{NAME}_kernel"); a("s_subb_u32 s33, s33, 0")
        a("s_and_b32 s33, s33, 0xffff"); a(f"s_mov_b32 s34, L_codeend-{NAME}_kernel"); a("s_mov_b32 s35, 0x20000")
        a("v_lshlrev_b32 v2, 4, v0")
        a("s_mov_b32 s36, 0")
        a.label("L_t7")
        a("buffer_load_dwordx4 v[4:7], v2, s[32:35], s36 offen")
        a("s_add_u32 s36, s36, 1024"); a("s_cmp_lt_u32 s36, s34"); a("s_cbranch_scc1 L_t7")
        a.label("L_not7")
        a("s_cmp_eq_u32 s3, 6")
        a("s_cbranch_scc0 L_not6")
        a(f"v_mov_b32 v2, {LDS_PROG}"); a("v_mov_b32 v3, 99"); a("ds_write_b32 v2, v3")
        a.label("L_not6")
    a("s_branch L_gather")

    a.label("L_w4")
    srd(a, 32, 4, 5, 1152)
    srd(a, 36, 10, 11, 576 * 8192)
    a("v_lshlrev_b32 v2, 2, v0")
    for i in range(5):
        a(f"buffer_load_dword v{8+i}, v2, s[32:35], 0 offen offset:{256*i}")
    a("s_lshr_b32 s40, s2, 3"); a("s_bfe_u32 s41, s2, 0x10002"); a("s_lshl_b32 s41, s41, 5"); a("s_add_u32 s40, s40, s41")
    a("s_and_b32 s41, s2, 3")
    a(f"s_mul_i32 s42, s41, {144*8192}"); a("s_lshl_b32 s43, s40, 7"); a("s_add_u32 s42, s42, s43")
    a("v_lshrrev_b32 v3, 3, v0"); a("v_lshlrev_b32 v3, 13, v3"); a("v_and_b32 v4, 7, v0"); a("v_lshl_add_u32 v3, v4, 4, v3")
    WQ = 64
    for n in range(18):
        a(f"buffer_load_dwordx4 {vr(WQ+4*n,4)}, v3, s[36:39], s42 offen {cfg.WFLAGS}")
        if n < 17: a("s_add_u32 s42, s42, 65536")
    SELX = 16
    pv_selectors(a, SELX, mode="lo", t=(20, 21, 22, 23))
    a("s_waitcnt vmcnt(18)")
    st.mark(1)
    layernorm(a, X=8, F=24, out=8, tmp=36)
    a(f"v_lshlrev_b32 v2, 2, v0"); a(f"v_add_u32 v2, {LDS_XN}, v2")
    for i in range(5): a(f"ds_write_b32 v2, v{8+i} offset:{256*i}")
    a("s_mul_i32 s42, s41, 288"); a(f"s_add_u32 s42, s42, {LDS_XN}")
    a("v_lshrrev_b32 v2, 3, v0"); a("v_lshlrev_b32 v2, 1, v2"); a("v_add_u32 v2, s42, v2")
    a("s_waitcnt lgkmcnt(0)")
    XV = 24
    for n in range(18): a(f"ds_read_u16 v{XV+n}, v2 offset:{16*n}")
    st.mark(2)
    AX = 44; DQ = 52
    a("s_waitcnt lgkmcnt(0)")
    for n in range(18):
        A = AX + 4 * (n & 1)
        for d in range(4): a(f"v_perm_b32 v{A+d}, v{XV+n}, v{XV+n}, v{SELX+d}")
        a(f"s_waitcnt vmcnt({17-n})")
        a("s_nop 0")
        a(f"v_mfma_f32_16x16x32_bf16 {vr(DQ,4)}, {vr(A,4)}, {vr(WQ+4*n,4)}, {'0' if n == 0 else vr(DQ,4)}")
    a.nop(8)
    fold40(a, [DQ+r for r in range(4)], [56, 57, 58, 59])
    a("s_waitcnt lgkmcnt(0)")
    a("s_add_u32 s24, s24, 1")
    a("s_lshl_b32 s42, s40, 2"); a("s_add_u32 s42, s42, s41"); a("s_lshl_b32 s42, s42, 9"); a(f"s_add_u32 s42, s42, {WS_QP}")
    a("v_and_b32 v2, 7, v0"); a("v_lshlrev_b32 v2, 6, v2"); a("v_lshrrev_b32 v3, 4, v0"); a("v_lshl_add_u32 v2, v3, 5, v2")
    a(f"v_mov_b32 v60, v{DQ}"); a("v_mov_b32 v61, s24"); a(f"v_mov_b32 v62, v{DQ+1}"); a("v_mov_b32 v63, s24")
    a(f"v_mov_b32 v44, v{DQ+2}"); a("v_mov_b32 v45, s24"); a(f"v_mov_b32 v46, v{DQ+3}"); a("v_mov_b32 v47, s24")
    a("s_mov_b32 exec_lo, 0x00ff00ff"); a("s_mov_b32 exec_hi, 0")
    a("buffer_store_dwordx4 v[60:63], v2, s[28:31], s42 offen sc0 sc1")
    a("buffer_store_dwordx4 v[44:47], v2, s[28:31], s42 offen offset:16 sc0 sc1")
    a("s_mov_b64 exec, -1")
    st.mark(3)
    a("s_branch L_gather2")

    a.label("L_gather")
    a("s_waitcnt lgkmcnt(0)")
    a("s_add_u32 s24, s24, 1")
    a.label("L_gather2")
    a("s_lshl_b32 s42, s25, 2"); a("s_add_u32 s42, s42, s3"); a("s_sub_u32 s42, s42, 4"); a("s_lshl_b32 s42, s42, 11"); a(f"s_add_u32 s42, s42, {WS_QP}")
    a("v_lshlrev_b32 v2, 3, v0")
    a(f"s_mov_b32 s43, {cfg.SPIN_MAX}")
    a.label("L_gpoll")
    for b in range(4):
        a(f"buffer_load_dwordx2 v[{8+2*b}:{9+2*b}], v2, s[28:31], s42 offen offset:{512*b} sc1")
    a("s_waitcnt vmcnt(0)")
    a("v_cmp_eq_u32 vcc, s24, v9"); a("v_cmp_eq_u32 s[44:45], s24, v11"); a("v_cmp_eq_u32 s[46:47], s24, v13"); a("v_cmp_eq_u32 s[48:49], s24, v15")
    a("s_and_b64 vcc, vcc, s[44:45]"); a("s_and_b64 s[46:47], s[46:47], s[48:49]"); a("s_and_b64 vcc, vcc, s[46:47]")
    a("s_cmp_eq_u64 vcc, -1")
    a("s_cbranch_scc1 L_gdone")
    spin_guard(a, 43, "L_gdone")
    a("s_sleep 2")
    a("s_branch L_gpoll")
    a.label("L_gdone")
    a("v_add_f32 v8, v8, v10"); a("v_add_f32 v8, v8, v12"); a("v_add_f32 v8, v8, v14")
    a("v_cvt_pk_bf16_f32 v8, v8, v8")
    a("s_sub_u32 s42, s3, 4"); a("s_lshl_b32 s42, s42, 7"); a(f"s_add_u32 s42, s42, {LDS_Q}")
    a("v_lshlrev_b32 v2, 1, v0"); a("v_add_u32 v2, s42, v2")
    a("ds_write_b16 v2, v8")
    a("s_waitcnt lgkmcnt(0)")
    st.mark(4)
    a("s_barrier")
    a("s_cmp_eq_u32 s3, 4"); a("s_cbranch_scc1 L_w4b")
    a("s_cmp_eq_u32 s3, 5"); a("s_cbranch_scc1 L_ffn")
    if cfg.TOUCH:
        a("s_cmp_eq_u32 s3, 6"); a("s_cbranch_scc1 L_w6")
    st.dump()
    a("s_endpgm")

    if cfg.TOUCH:
        a.label("L_w6")
        a(f"v_mov_b32 v2, {LDS_PROG}")
        a(f"s_mov_b32 s43, {cfg.SPIN_MAX}")
        a.label("L_w6poll")
        a("ds_read_b32 v3, v2"); a("s_waitcnt lgkmcnt(0)"); a("v_readfirstlane_b32 s44, v3")
        a("s_cmp_le_u32 s44, 2"); a("s_cbranch_scc1 L_w6go")
        spin_guard(a, 43, "L_w6go")
        a("s_sleep 16")
        a("s_branch L_w6poll")
        a.label("L_w6go")
        a("s_getpc_b64 s[32:33]")
        a.label("L_pc6")
        a(f"s_add_u32 s32, s32, L_tail-L_pc6"); a("s_addc_u32 s33, s33, 0")
        a("s_and_b32 s33, s33, 0xffff"); a(f"s_mov_b32 s34, L_codeend-L_tail"); a("s_mov_b32 s35, 0x20000")
        a("v_lshlrev_b32 v2, 4, v0")
        a("s_mov_b32 s36, 0")
        a.label("L_t6")
        a("buffer_load_dwordx4 v[4:7], v2, s[32:35], s36 offen")
        a("s_add_u32 s36, s36, 1024"); a("s_cmp_lt_u32 s36, s34"); a("s_cbranch_scc1 L_t6")
        a("s_endpgm")

    a.label("L_ffn")
    a("s_cmp_ge_u32 s2, 72"); a("s_cbranch_scc1 L_ffn_end")
    gen_ffn(a, cfg, st)
    a.label("L_ffn_end")
    st.dump()
    a("s_endpgm")

    a.label("L_w4b")
    gen_w4b(a, cfg, st)

    a.label("L_end")
    a("s_endpgm")
    a.label("L_codeend")
    a.raw(".section .rodata,\"a\"")
    a.raw(".p2align 6")
    a.raw(f".amdhsa_kernel {NAME}_kernel")
    a.raw("  .amdhsa_next_free_vgpr 256")
    a.raw("  .amdhsa_next_free_sgpr 102")
    a.raw("  .amdhsa_accum_offset 256")
    a.raw("  .amdhsa_group_segment_fixed_size 0")
    a.raw("  .amdhsa_kernarg_size 88")
    a.raw("  .amdhsa_user_sgpr_count 2")
    a.raw("  .amdhsa_user_sgpr_kernarg_segment_ptr 1")
    a.raw("  .amdhsa_system_sgpr_workgroup_id_x 1")
    a.raw("  .amdhsa_float_denorm_mode_32 3")
    a.raw("  .amdhsa_float_denorm_mode_16_64 3")
    a.raw(".end_amdhsa_kernel")
    return a.text()

def pv_selectors(a, SEL, mode, t):
    t0, t1, t2, t3 = t
    if mode == "pv":
        a(f"v_bfe_u32 v{t0}, v0, 3, 1"); a(f"v_lshlrev_b32 v{t0}, 1, v{t0}")
    elif mode == "lo":
        a(f"v_mov_b32 v{t0}, 0")
    elif mode == "wo":
        a(f"v_bfe_u32 v{t0}, v0, 4, 1"); a(f"v_lshlrev_b32 v{t0}, 1, v{t0}")
    a(f"v_add_u32 v{t1}, 1, v{t0}"); a(f"v_lshl_or_b32 v{t0}, v{t1}, 8, v{t0}")
    a(f"v_or_b32 v{t1}, 0x0c0c0000, v{t0}")
    a(f"v_lshlrev_b32 v{t2}, 16, v{t0}"); a(f"v_or_b32 v{t2}, 0x0c0c, v{t2}")
    a(f"v_and_b32 v{t3}, 1, v0"); a(f"v_cmp_eq_u32 vcc, 1, v{t3}")
    a("s_nop 1")
    a(f"v_cndmask_b32 v{t0}, v{t1}, v{t2}, vcc")
    a(f"v_bfe_u32 v{t3}, v0, 1, 2")
    if mode == "wo":
        a(f"v_bfe_u32 v{t2}, v0, 3, 1"); a(f"v_lshl_or_b32 v{t3}, v{t2}, 2, v{t3}")
    a(f"v_mov_b32 v{t1}, 0x0c0c0c0c")
    for d in range(4):
        a(f"v_cmp_eq_u32 vcc, {d}, v{t3}")
        a("s_nop 1")
        a(f"v_cndmask_b32 v{SEL+d}, v{t1}, v{t0}, vcc")

def div_uniform(a, q, num, den, r, e):
    a(f"v_mul_f32 v{q}, v{num}, v{r}")
    a(f"v_fma_f32 v{e}, -v{q}, v{den}, v{num}")
    a(f"v_fma_f32 v{q}, v{e}, v{r}, v{q}")

def recip(a, r, den, e):
    a(f"v_rcp_f32 v{r}, v{den}")
    a("s_nop 0")
    a(f"v_fma_f32 v{e}, -v{den}, v{r}, 1.0")
    a(f"v_fma_f32 v{r}, v{e}, v{r}, v{r}")

def layernorm(a, X, F, out, tmp):
    t = tmp
    for i in range(5):
        a(f"v_lshlrev_b32 v{F+2*i}, 16, v{X+i}"); a(f"v_and_b32 v{F+2*i+1}, 0xffff0000, v{X+i}")
    S = t; T = t + 1; N = t + 2; R = t + 3; E = t + 4; M = t + 5; DEN = t + 6; A = t + 7
    a(f"v_add_f32 v{S}, v{F}, v{F+1}")
    for i in range(2, 10): a(f"v_add_f32 v{S}, v{S}, v{F+i}")
    allreduce(a, "v_add_f32", [S], [T])
    a(f"v_mov_b32 v{N}, 0x44100000")
    recip(a, R, N, E)
    div_uniform(a, M, S, N, R, E)
    a(f"v_mov_b32 v{S}, 0")
    for i in range(8):
        a(f"v_sub_f32 v{T}, v{F+i}, v{M}"); a(f"v_fma_f32 v{S}, v{T}, v{T}, v{S}")
    a("s_mov_b32 exec_hi, 0")
    for i in range(8, 10):
        a(f"v_sub_f32 v{T}, v{F+i}, v{M}"); a(f"v_fma_f32 v{S}, v{T}, v{T}, v{S}")
    a("s_mov_b32 exec_hi, -1")
    allreduce(a, "v_add_f32", [S], [T])
    div_uniform(a, A, S, N, R, E)
    a(f"v_cvt_pk_bf16_f32 v{T}, v{A}, v{M}")
    a(f"v_lshlrev_b32 v{A}, 16, v{T}"); a(f"v_and_b32 v{M}, 0xffff0000, v{T}")
    a(f"v_add_f32 v{A}, 0x3727c5ac, v{A}")
    a(f"v_cvt_pk_bf16_f32 v{T}, v{A}, v{A}"); a(f"v_lshlrev_b32 v{A}, 16, v{T}")
    a(f"v_sqrt_f32 v{A}, v{A}")
    a("s_nop 0")
    a(f"v_cvt_pk_bf16_f32 v{T}, v{A}, v{A}"); a(f"v_lshlrev_b32 v{DEN}, 16, v{T}")
    recip(a, R, DEN, E)
    for i in range(5):
        x0, x1 = F + 2*i, F + 2*i + 1
        a(f"v_sub_f32 v{x0}, v{x0}, v{M}"); a(f"v_sub_f32 v{x1}, v{x1}, v{M}")
        a(f"v_cvt_pk_bf16_f32 v{T}, v{x0}, v{x1}")
        a(f"v_lshlrev_b32 v{x0}, 16, v{T}"); a(f"v_and_b32 v{x1}, 0xffff0000, v{T}")
        a(f"v_mul_f32 v{S}, v{x0}, v{R}"); a(f"v_mul_f32 v{A}, v{x1}, v{R}")
        a(f"v_fma_f32 v{E}, -v{S}, v{DEN}, v{x0}"); a(f"v_fma_f32 v{N}, -v{A}, v{DEN}, v{x1}")
        a(f"v_fma_f32 v{S}, v{E}, v{R}, v{S}"); a(f"v_fma_f32 v{A}, v{N}, v{R}, v{A}")
        a(f"v_cvt_pk_bf16_f32 v{out+i}, v{S}, v{A}")

def fold40(a, regs, tmps):
    for r, t in zip(regs, tmps): a(f"v_mov_b32 v{t}, v{r}")
    a.nop(2)
    for r, t in zip(regs, tmps): a(f"v_permlane32_swap_b32 v{r}, v{t}")
    a.nop(2)
    for r, t in zip(regs, tmps):
        a(f"v_add_f32_dpp v{r}, v{t}, v{r} row_ror:8 row_mask:0xf bank_mask:0xf")

def gen_ffn(a, cfg, st):
    st.mark(5)
    srd(a, 32, 16, 17, 576 * 9216)
    srd(a, 36, 18, 19, 4608 * 1152)
    SEL = 16
    pv_selectors(a, SEL, mode="lo", t=(20, 21, 22, 23))
    a("v_lshrrev_b32 v3, 3, v0"); a("v_mul_u32_u24 v3, 9216, v3"); a("v_and_b32 v4, 7, v0"); a("v_lshl_add_u32 v3, v4, 4, v3")
    a("s_lshl_b32 s40, s2, 7")
    R = 64
    for j in range(8):
        a(f"buffer_load_dwordx4 {vr(R+4*j,4)}, v3, s[32:35], s40 offen {cfg.WFLAGS}")
        a(f"s_add_u32 s40, s40, {8*9216}")
    a("v_lshrrev_b32 v2, 3, v0"); a("v_lshlrev_b32 v2, 1, v2"); a(f"v_add_u32 v2, {LDS_XN}, v2")
    DH = 24; XV = 28; AX = 40
    for r in range(4): a(f"v_mov_b32 v{DH+r}, 0")
    a("s_mov_b32 s41, 9")
    a.label("L_f1")
    for j in range(8): a(f"ds_read_u16 v{XV+j}, v2 offset:{16*j}")
    a("v_add_u32 v2, 128, v2")
    a("s_waitcnt lgkmcnt(0)")
    for j in range(8):
        A = AX + 4 * (j & 1)
        for d in range(4): a(f"v_perm_b32 v{A+d}, v{XV+j}, v{XV+j}, v{SEL+d}")
        a("s_waitcnt vmcnt(7)")
        a("s_nop 0")
        a(f"v_mfma_f32_16x16x32_bf16 {vr(DH,4)}, {vr(A,4)}, {vr(R+4*j,4)}, {vr(DH,4)}")
        a(f"buffer_load_dwordx4 {vr(R+4*j,4)}, v3, s[32:35], s40 offen {cfg.WFLAGS}")
        a(f"s_add_u32 s40, s40, {8*9216}")
    a("s_sub_u32 s41, s41, 1"); a("s_cmp_lg_u32 s41, 0"); a("s_cbranch_scc1 L_f1")
    a("s_waitcnt vmcnt(0)")
    a("v_lshrrev_b32 v3, 3, v0"); a("v_mul_u32_u24 v3, 1152, v3"); a("v_and_b32 v4, 7, v0"); a("v_lshl_add_u32 v3, v4, 4, v3")
    a(f"s_mul_i32 s40, s2, {64*1152}")
    for cb in range(9):
        a(f"buffer_load_dwordx4 {vr(R+4*cb,4)}, v3, s[36:39], s40 offen offset:{128*cb} {cfg.WFLAGS}")
    a(f"s_add_u32 s40, s40, {8*1152}")
    a.nop(8)
    fold40(a, [DH+r for r in range(4)], [48, 49, 50, 51])
    a(f"v_cvt_pk_bf16_f32 v48, v{DH}, v{DH+1}"); a(f"v_cvt_pk_bf16_f32 v49, v{DH+2}, v{DH+3}")
    a(f"v_lshlrev_b32 v{DH}, 16, v48"); a(f"v_and_b32 v{DH+1}, 0xffff0000, v48")
    a(f"v_lshlrev_b32 v{DH+2}, 16, v49"); a(f"v_and_b32 v{DH+3}, 0xffff0000, v49")
    for r in range(4):
        a(f"v_mul_f32 v{52+r}, 0xbfb8aa3b, v{DH+r}")
    for r in range(4): a(f"v_exp_f32 v{52+r}, v{52+r}")
    a("s_nop 0")
    for r in range(4): a(f"v_add_f32 v{52+r}, 1.0, v{52+r}")
    for r in range(4): a(f"v_min_f32 v{52+r}, 0x7e967699, v{52+r}")
    for r in range(4):
        recip(a, 56, 52 + r, 57)
        div_uniform(a, 58, DH + r, 52 + r, 56, 57)
        a(f"v_mov_b32 v{DH+r}, v58")
    a(f"v_cvt_pk_bf16_f32 v48, v{DH}, v{DH+1}"); a(f"v_cvt_pk_bf16_f32 v49, v{DH+2}, v{DH+3}")
    a("v_and_b32 v2, 7, v0"); a("v_lshlrev_b32 v2, 4, v2"); a("v_lshrrev_b32 v4, 4, v0"); a("v_lshl_add_u32 v2, v4, 3, v2"); a(f"v_add_u32 v2, {LDS_H}, v2")
    a("s_mov_b32 exec_lo, 0x00ff00ff"); a("s_mov_b32 exec_hi, 0")
    a("ds_write_b64 v2, v[48:49]")
    a("s_mov_b64 exec, -1")
    a("s_waitcnt lgkmcnt(0)")
    a("v_lshrrev_b32 v2, 3, v0"); a("v_lshlrev_b32 v2, 1, v2"); a(f"v_add_u32 v2, {LDS_H}, v2")
    ACC = 128
    for r in range(36): a(f"v_mov_b32 v{ACC+r}, 0")
    a("s_mov_b32 s41, 8")
    a.label("L_f2")
    a(f"ds_read_u16 v{XV}, v2")
    a("v_add_u32 v2, 16, v2")
    a("s_waitcnt lgkmcnt(0)")
    for d in range(4): a(f"v_perm_b32 v{AX+d}, v{XV}, v{XV}, v{SEL+d}")
    a("s_cmp_eq_u32 s41, 1"); a("s_cselect_b32 s38, 0, s38")
    for cb in range(9):
        a("s_waitcnt vmcnt(8)")
        if cb == 0: a("s_nop 0")
        a(f"v_mfma_f32_16x16x32_bf16 {vr(ACC+4*cb,4)}, {vr(AX,4)}, {vr(R+4*cb,4)}, {vr(ACC+4*cb,4)}")
        a(f"buffer_load_dwordx4 {vr(R+4*cb,4)}, v3, s[36:39], s40 offen offset:{128*cb} {cfg.WFLAGS}")
    a(f"s_add_u32 s40, s40, {8*1152}")
    a("s_sub_u32 s41, s41, 1"); a("s_cmp_lg_u32 s41, 0"); a("s_cbranch_scc1 L_f2")
    a("s_waitcnt vmcnt(0)")
    a.nop(8)
    for cb in range(9):
        fold40(a, [ACC+4*cb+r for r in range(4)], [48, 49, 50, 51])
    a("v_and_b32 v2, 7, v0"); a(f"v_mul_u32_u24 v2, {72*64}, v2"); a("v_lshrrev_b32 v4, 4, v0"); a("v_lshl_add_u32 v2, v4, 4, v2")
    a("s_lshl_b32 s40, s2, 6"); a(f"s_add_u32 s40, s40, {WS_BP}")
    a("s_mov_b32 exec_lo, 0x00ff00ff"); a("s_mov_b32 exec_hi, 0")
    a("v_mov_b32 v49, s24"); a("v_mov_b32 v51, s24"); a("v_mov_b32 v53, s24"); a("v_mov_b32 v55, s24")
    for cb in range(9):
        a(f"v_mov_b32 v48, v{ACC+4*cb}"); a(f"v_mov_b32 v50, v{ACC+4*cb+1}")
        a(f"v_mov_b32 v52, v{ACC+4*cb+2}"); a(f"v_mov_b32 v54, v{ACC+4*cb+3}")
        a("buffer_store_dwordx4 v[48:51], v2, s[28:31], s40 offen sc0 sc1")
        a("buffer_store_dwordx4 v[52:55], v2, s[28:31], s40 offen offset:32 sc0 sc1")
        a(f"s_add_u32 s40, s40, {8*72*64}")
        a("s_nop 1")
    a("s_mov_b64 exec, -1")
    st.mark(6)

def check_tags(a, tagregs, t0, t1, ok_label, mask_s=None):
    regs = list(tagregs)
    a(f"v_min_u32 v{t0}, v{regs[0]}, v{regs[1]}"); a(f"v_max_u32 v{t1}, v{regs[0]}, v{regs[1]}")
    i = 2
    while i + 1 < len(regs):
        a(f"v_min3_u32 v{t0}, v{t0}, v{regs[i]}, v{regs[i+1]}"); a(f"v_max3_u32 v{t1}, v{t1}, v{regs[i]}, v{regs[i+1]}")
        i += 2
    if i < len(regs):
        a(f"v_min_u32 v{t0}, v{t0}, v{regs[i]}"); a(f"v_max_u32 v{t1}, v{t1}, v{regs[i]}")
    a(f"v_cmp_eq_u32 vcc, s24, v{t0}"); a(f"v_cmp_eq_u32 s[44:45], s24, v{t1}")
    a("s_and_b64 vcc, vcc, s[44:45]")
    a("s_cmp_eq_u64 vcc, -1")
    a(f"s_cbranch_scc1 {ok_label}")

def reduce_groups(a, regs, tmps, rors):
    allreduce(a, "v_add_f32", regs, tmps, rors=rors)

def gen_w4b(a, cfg, st):
    srd(a, 32, 12, 13, 4096 * 1152)
    a("s_lshl_b32 s40, s25, 8"); a("s_lshl_b32 s41, s26, 4"); a("s_add_u32 s40, s40, s41"); a("s_mul_i32 s40, s40, 1152")
    a("v_lshrrev_b32 v3, 4, v0"); a("v_mul_u32_u24 v3, 1152, v3"); a("v_and_b32 v4, 15, v0"); a("v_lshl_add_u32 v3, v4, 4, v3")
    a("v_cmp_gt_u32 vcc, 8, v4"); a("v_bfrev_b32 v5, 1"); a("s_nop 0"); a("v_cndmask_b32 v4, v5, v3, vcc")
    WO = 64
    for rb in range(4):
        for cb in range(5):
            vo = 3 if cb < 4 else 4
            a(f"buffer_load_dwordx4 {vr(WO+4*(rb*5+cb),4)}, v{vo}, s[32:35], s40 offen offset:{256*cb} {cfg.WFLAGS}")
        a(f"s_add_u32 s40, s40, {4*1152}")
    SELW = 16
    pv_selectors(a, SELW, mode="wo", t=(20, 21, 22, 23))
    vML, vO, vAP, vFin = 6, 7, 8, 9
    a("s_lshl_b32 s41, s25, 1"); a("s_lshr_b32 s42, s26, 3"); a("s_add_u32 s41, s41, s42"); a("s_lshl_b32 s41, s41, 10"); a(f"s_add_u32 s41, s41, {WS_ML}")
    a(f"v_lshlrev_b32 v{vML}, 4, v0"); a(f"v_add_u32 v{vML}, s41, v{vML}")
    a("s_lshl_b32 s41, s25, 4"); a("s_add_u32 s41, s41, s26"); a("s_lshl_b32 s41, s41, 13"); a(f"s_add_u32 s41, s41, {WS_OP}")
    a(f"v_lshlrev_b32 v{vO}, 4, v0"); a(f"v_add_u32 v{vO}, s41, v{vO}")
    a(f"v_and_b32 v{vAP}, 15, v0"); a(f"v_lshlrev_b32 v{vAP}, 14, v{vAP}"); a("v_bfe_u32 v10, v0, 4, 1"); a(f"v_lshl_add_u32 v{vAP}, v10, 4, v{vAP}")
    a("s_lshl_b32 s41, s2, 6"); a(f"s_add_u32 s41, s41, {WS_AP}"); a(f"v_add_u32 v{vAP}, s41, v{vAP}")
    vBP = 10
    a(f"v_lshrrev_b32 v{vBP}, 3, v0"); a(f"v_lshlrev_b32 v{vBP}, 2, v{vBP}")
    BS0, BS1, XC = 12, 13, 14
    a("s_cmp_lt_u32 s2, 184")
    a("s_cbranch_scc1 L_nofin1")
    a("s_sub_u32 s50, s2, 184")
    srd(a, 36, 4, 5, 1152)
    a("v_and_b32 v24, 1, v0"); a("v_lshlrev_b32 v24, 3, v24"); a("v_bfe_u32 v25, v0, 1, 1"); a("v_lshl_add_u32 v24, v25, 2, v24")
    a("s_lshl_b32 s51, s50, 4"); a("v_add_u32 v24, s51, v24")
    a(f"v_mov_b32 v{vFin}, v24")
    a(f"buffer_load_dword v{XC}, v24, s[36:39], 0 offen")
    a(f"s_mul_i32 s51, s50, {72*64}"); a(f"s_add_u32 s51, s51, {WS_BP}")
    a("v_lshlrev_b32 v25, 4, v0"); a("v_add_u32 v25, s51, v25")
    PB = 160
    a(f"v_mov_b32 v{PB+16}, 0"); a(f"v_mov_b32 v{PB+17}, s24"); a(f"v_mov_b32 v{PB+18}, 0"); a(f"v_mov_b32 v{PB+19}, s24")
    a(f"s_mov_b32 s43, {cfg.SPIN_MAX}")
    a.label("L_bpoll")
    for i in range(4):
        a(f"buffer_load_dwordx4 {vr(PB+4*i,4)}, v25, s[28:31], 0 offen offset:{1024*i} sc1")
    a("v_add_u32 v26, 4096, v25")
    a("s_mov_b32 exec_hi, 0")
    a(f"buffer_load_dwordx4 {vr(PB+16,4)}, v26, s[28:31], 0 offen sc1")
    a("s_mov_b32 exec_hi, -1")
    a("s_waitcnt vmcnt(0)")
    check_tags(a, [PB+4*i+k for i in range(5) for k in (1, 3)], 27, 28, "L_bdone")
    spin_guard(a, 43, "L_bdone")
    a("s_sleep 64")
    a("s_branch L_bpoll")
    a.label("L_bdone")
    a(f"v_add_f32 v{BS0}, v{PB}, v{PB+4}"); a(f"v_add_f32 v{BS1}, v{PB+2}, v{PB+6}")
    for i in range(2, 5):
        a(f"v_add_f32 v{BS0}, v{BS0}, v{PB+4*i}"); a(f"v_add_f32 v{BS1}, v{BS1}, v{PB+4*i+2}")
    reduce_groups(a, [BS0, BS1], [27, 28], (4, 8))
    a(f"v_cvt_pk_bf16_f32 v27, v{BS0}, v{BS1}")
    a(f"v_lshlrev_b32 v{BS0}, 16, v27"); a(f"v_and_b32 v{BS1}, 0xffff0000, v27")
    a.label("L_nofin1")
    a("s_waitcnt vmcnt(0)")
    st.mark(5)
    a("s_barrier")
    a.label("L_tail")
    st.mark(6)
    ML = 160
    a(f"s_mov_b32 s43, {cfg.SPIN_MAX}")
    a.label("L_mlpoll")
    a(f"buffer_load_dwordx4 {vr(ML,4)}, v{vML}, s[28:31], 0 offen sc1")
    a("s_waitcnt vmcnt(0)")
    check_tags(a, [ML+1, ML+3], 27, 28, "L_mldone")
    spin_guard(a, 43, "L_mldone")
    a("s_sleep 4")
    a("s_branch L_mlpoll")
    a.label("L_mldone")
    st.mark(7)
    OD = 168
    def oloads():
        for i in range(8):
            if i < 4: a(f"buffer_load_dwordx4 {vr(OD+4*i,4)}, v{vO}, s[28:31], 0 offen offset:{1024*i} sc1")
            else:
                if i == 4: a(f"v_add_u32 v29, 4096, v{vO}")
                a(f"buffer_load_dwordx4 {vr(OD+4*i,4)}, v29, s[28:31], 0 offen offset:{1024*(i-4)} sc1")
    oloads()
    a(f"v_mov_b32 v30, v{ML}")
    allreduce(a, "v_max_f32", [30], [31])
    a(f"v_sub_f32 v30, v{ML}, v30"); a(f"v_mul_f32 v30, {LOG2E:#x}, v30"); a("v_exp_f32 v30, v30")
    a("s_nop 0")
    a(f"v_mul_f32 v32, v30, v{ML+2}")
    allreduce(a, "v_add_f32", [32], [31])
    recip(a, 33, 32, 31)
    div_uniform(a, 34, 30, 32, 33, 31)
    WV = 36
    for i in range(8):
        a(f"v_add_u32 v35, {32*i}, v{vBP}")
        a(f"ds_bpermute_b32 v{WV+i}, v35, v34")
    a(f"s_mov_b32 s43, {cfg.SPIN_MAX}")
    a.label("L_opoll")
    a("s_waitcnt vmcnt(0)")
    check_tags(a, [OD+4*i+k for i in range(8) for k in (1, 3)], 27, 28, "L_odone")
    spin_guard(a, 43, "L_odone")
    oloads()
    a("s_branch L_opoll")
    a.label("L_odone")
    st.mark(8)
    a("s_waitcnt lgkmcnt(0)")
    a(f"v_mul_f32 v44, v{WV}, v{OD}"); a(f"v_mul_f32 v45, v{WV}, v{OD+2}")
    for i in range(1, 8):
        a(f"v_fma_f32 v44, v{WV+i}, v{OD+4*i}, v44"); a(f"v_fma_f32 v45, v{WV+i}, v{OD+4*i+2}, v45")
    reduce_groups(a, [44, 45], [27, 28], (8,))
    a("v_cvt_pk_bf16_f32 v46, v44, v45")
    AW = 48; ACC = 200
    for rb in range(4):
        A = AW + 4 * rb
        if rb == 0: a.nop(2)
        a(f"v_mov_b32_dpp v47, v46 row_newbcast:{rb} row_mask:0x3 bank_mask:0xf")
        a(f"v_mov_b32_dpp v47, v46 row_newbcast:{4+rb} row_mask:0xc bank_mask:0xf")
        for d in range(4): a(f"v_perm_b32 v{A+d}, v47, v47, v{SELW+d}")
    a.nop(2)
    for rb in range(4):
        for cb in range(5):
            a(f"v_mfma_f32_16x16x32_bf16 {vr(ACC+4*cb,4)}, {vr(AW+4*rb,4)}, {vr(WO+4*(rb*5+cb),4)}, {'0' if rb == 0 else vr(ACC+4*cb,4)}")
    ST = 224
    for k in range(4): a(f"v_mov_b32 v{ST+2*k+1}, s24")
    for k in range(4): a(f"v_mov_b32 v{ST+8+2*k+1}, s24")
    a("s_mov_b32 exec_hi, 0")
    a.nop(4)
    for cb in range(5):
        S = ST + 8 * (cb & 1)
        if cb == 4: a("s_mov_b32 exec_lo, 0x00ff00ff")
        for r in range(4): a(f"v_mov_b32 v{S+2*r}, v{ACC+4*cb+r}")
        so = 16 * cb * 256 * 64
        a(f"s_mov_b32 s41, {so}")
        a(f"buffer_store_dwordx4 {vr(S,4)}, v{vAP}, s[28:31], s41 offen sc0 sc1")
        a(f"buffer_store_dwordx4 {vr(S+4,4)}, v{vAP}, s[28:31], s41 offen offset:32 sc0 sc1")
    a("s_mov_b64 exec, -1")
    st.mark(9)
    a("s_cmp_lt_u32 s2, 184")
    a("s_cbranch_scc1 L_w4end")
    a(f"s_lshl_b32 s51, s50, 14"); a(f"s_add_u32 s51, s51, {WS_AP}")
    a("v_lshlrev_b32 v25, 4, v0"); a("v_add_u32 v25, s51, v25")
    for k in range(1, 4): a(f"v_add_u32 v{24+k+4}, {4096*k}, v25")
    PA = 64
    a(f"s_mov_b32 s43, {cfg.SPIN_MAX}")
    a.label("L_apoll")
    for i in range(16):
        vo = 25 if i < 4 else 28 + (i // 4)
        a(f"buffer_load_dwordx4 {vr(PA+4*i,4)}, v{vo}, s[28:31], 0 offen offset:{1024*(i%4)} sc1")
    a("s_waitcnt vmcnt(0)")
    check_tags(a, [PA+4*i+k for i in range(16) for k in (1, 3)], 27, 26, "L_adone")
    spin_guard(a, 43, "L_adone")
    a("s_branch L_apoll")
    a.label("L_adone")
    st.mark(10)
    a(f"v_add_f32 v44, v{PA}, v{PA+4}"); a(f"v_add_f32 v45, v{PA+2}, v{PA+6}")
    for i in range(2, 16):
        a(f"v_add_f32 v44, v44, v{PA+4*i}"); a(f"v_add_f32 v45, v45, v{PA+4*i+2}")
    reduce_groups(a, [44, 45], [27, 26], (4, 8))
    a("v_cvt_pk_bf16_f32 v46, v44, v45")
    a("v_lshlrev_b32 v44, 16, v46"); a("v_and_b32 v45, 0xffff0000, v46")
    a(f"v_lshlrev_b32 v47, 16, v{XC}"); a(f"v_and_b32 v48, 0xffff0000, v{XC}")
    a("v_add_f32 v44, v47, v44"); a("v_add_f32 v45, v48, v45")
    a("v_cvt_pk_bf16_f32 v46, v44, v45")
    a("v_lshlrev_b32 v44, 16, v46"); a("v_and_b32 v45, 0xffff0000, v46")
    a(f"v_add_f32 v44, v44, v{BS0}"); a(f"v_add_f32 v45, v45, v{BS1}")
    a("v_cvt_pk_bf16_f32 v46, v44, v45")
    srd(a, 36, 20, 21, 1152)
    a("s_mov_b64 exec, 0xf")
    a(f"buffer_store_dword v46, v{vFin}, s[36:39], 0 offen")
    a("s_cmp_eq_u32 s50, 0")
    a("s_cbranch_scc0 L_noE")
    a("s_mov_b64 exec, 1")
    a("v_mov_b32 v47, s24"); a(f"v_mov_b32 v48, {WS_E}")
    a("buffer_store_dword v47, v48, s[28:31], 0 offen sc0 sc1")
    a.label("L_noE")
    a("s_mov_b64 exec, -1")
    st.mark(11)
    a.label("L_w4end")
    st.dump()
    a("s_endpgm")

if __name__ == "__main__":
    import argparse
    ap = argparse.ArgumentParser()
    ap.add_argument("-o", default="out.s")
    ap.add_argument("--set", action="append", default=[])
    args = ap.parse_args()
    cfg = Cfg()
    for kv in args.set:
        k, v = kv.split("=", 1)
        old = getattr(cfg, k)
        if isinstance(old, bool): v = v in ("1", "True", "true")
        elif isinstance(old, int): v = int(v, 0)
        setattr(cfg, k, v)
    open(args.o, "w").write(gen(cfg))
```

```python
import sys
from asmlib import Asm, vr, sr

NAME = "parallel_sum__gqa_block_cached__dense_activation_silu__decode"
NWG = 256

LDS_X = 0
LDS_XN = 131072
LDS_Q = LDS_XN + 1280
LDS_H = LDS_Q + 512
LDS_PROG = LDS_H + 128
LDS_TOTAL = 133120

WS_E = 0
WS_QP = 0x1000
WS_ML = 0x40000
WS_OP = 0x100000
WS_AP = 0x400000
WS_BP = 0x600000
WS_DIAG = 0x680000
WS_SIZE = 0x700000

SCALE = 0x3DB504F3
LOG2E = 0x3FB8AA3B
NEG_INF = 0xFF800000

class Cfg:
    D = 6
    MULT = 677
    STAMPS = False
    KFLAGS = "nt"
    VFLAGS = "nt"
    WFLAGS = "nt"
    SPIN_MAX = 200000
    TOUCH = True
    PREBAR = 48
    NOROUND = False

def srd(a, dst, lo, hi, size):
    a(f"s_mov_b32 s{dst}, s{lo}")
    a(f"s_and_b32 s{dst+1}, s{hi}, 0xffff")
    a(f"s_mov_b32 s{dst+2}, {size}")
    a(f"s_mov_b32 s{dst+3}, 0x20000")

def allreduce(a, op, regs, tmps, rors=(8, 4, 2, 1), cross=True):
    n = len(regs)
    for k in rors:
        a.nop(max(0, 2 - (n - 1)))
        for r in regs:
            a(f"{op}_dpp v{r}, v{r}, v{r} row_ror:{k} row_mask:0xf bank_mask:0xf")
    if cross:
        for sw in ("v_permlane16_swap_b32", "v_permlane32_swap_b32"):
            for r, t in zip(regs, tmps):
                a(f"v_mov_b32 v{t}, v{r}")
            a.nop(2)
            for r, t in zip(regs, tmps):
                a(f"{sw} v{r}, v{t}")
            a.nop(1)
            for r, t in zip(regs, tmps):
                a(f"{op} v{r}, v{r}, v{t}")

class Stamps:
    def __init__(self, a, on):
        self.a = a; self.on = on
    def mark(self, i):
        if self.on:
            self.a(f"s_memrealtime s[{64+2*i}:{65+2*i}]")
    def init(self):
        if self.on:
            for i in range(16):
                self.a(f"s_mov_b64 s[{64+2*i}:{65+2*i}], 0")
    def dump(self):
        if not self.on: return
        a = self.a
        a("s_waitcnt lgkmcnt(0)")
        a("s_lshl_b32 s62, s2, 3"); a("s_add_u32 s62, s62, s3"); a("s_lshl_b32 s62, s62, 7"); a(f"s_add_u32 s62, s62, {WS_DIAG}")
        a("s_mov_b64 exec, 1")
        a("v_mov_b32 v250, 0")
        for i in range(0, 16, 2):
            for k in range(4):
                a(f"v_mov_b32 v{252+k}, s{64+2*i+k}")
            a(f"buffer_store_dwordx4 v[252:255], v250, s[28:31], s62 offen offset:{i*8}")
            a("s_nop 1")
        a("s_waitcnt vmcnt(0)")
        a("s_mov_b64 exec, -1")

def spin_guard(a, cnt_s, fail_label):
    a(f"s_sub_u32 s{cnt_s}, s{cnt_s}, 1")
    a(f"s_cbranch_scc1 {fail_label}")

def gen(cfg):
    a = Asm()
    st = Stamps(a, cfg.STAMPS)
    D = cfg.D
    a.raw(f"; @launch grid=({NWG},1,1) block=(512,1,1) lds={LDS_TOTAL}")
    a.raw('.amdgcn_target "amdgcn-amd-amdhsa--gfx950"')
    a.raw(".text")
    a.raw(f".globl {NAME}_kernel")
    a.raw(".p2align 8")
    a.raw(f".type {NAME}_kernel,@function")
    a.label(f"{NAME}_kernel")
    a(f"s_cmp_ge_u32 s2, {NWG}")
    a("s_cbranch_scc1 L_end")
    st.init()
    st.mark(0)
    a("s_load_dwordx16 s[4:19], s[0:1], 0")
    a("s_load_dwordx2 s[20:21], s[0:1], 64")
    a("s_load_dwordx2 s[22:23], s[0:1], 80")
    a("v_lshrrev_b32 v1, 6, v0")
    a("v_and_b32 v0, 63, v0")
    a("v_readfirstlane_b32 s3, v1")
    a("s_and_b32 s25, s2, 15")
    a("s_lshr_b32 s26, s2, 4")
    a("s_cmp_ge_u32 s3, 4")
    a("s_cbranch_scc1 L_helper")

    vK0, vK1, vV = 2, 3, 4
    vLds = 5
    vOadr, vMLadr = 6, 7
    RING = 64
    AQK = 128
    DA, DB, OO = 160, 164, 168
    APV = 172
    SEL = 180
    PK, BC, S0, S1 = 184, 185, 186, 187
    P0, Q0, P1, Q1 = 188, 189, 190, 191
    L0, L1 = 192, 193
    T0, T1, T2, T3, T4, T5 = 194, 195, 196, 197, 198, 199
    STG = 200
    PK1, U0, U1 = 232, 233, 234
    sKoff, sVoff, sM0, sM1 = 40, 41, 42, 43
    sLo, sHi = 44, 46
    sCnt, sStride, sLdsB, sU = 48, 49, 50, 51
    HT = 8192
    stride = (64 * cfg.MULT * HT) % (1 << 24)
    MASK = (1 << 24) - 1

    a(f"v_and_b32 v8, 7, v0")
    a(f"v_lshlrev_b32 v{vK0}, 8, v8")
    a(f"v_bfe_u32 v8, v0, 3, 1")
    a(f"v_lshl_add_u32 v{vK0}, v8, 6, v{vK0}")
    a(f"v_lshrrev_b32 v9, 4, v0")
    a(f"v_lshl_add_u32 v{vK0}, v9, 4, v{vK0}")
    a(f"v_add_u32 v{vK1}, 4096, v{vK0}")
    a(f"v_lshlrev_b32 v{vV}, 11, v9")
    a(f"v_and_b32 v8, 15, v0")
    a(f"v_lshl_add_u32 v{vV}, v8, 4, v{vV}")
    a(f"s_lshl_b32 s{sU}, s26, 2"); a(f"s_add_u32 s{sU}, s{sU}, s3")
    a(f"s_mul_i32 s{sKoff}, s{sU}, {(cfg.MULT * HT) % (1 << 32)}")
    a(f"s_and_b32 s{sKoff}, s{sKoff}, {MASK}")
    a(f"s_mov_b32 s{sVoff}, s{sKoff}")
    a(f"s_lshl_b32 s{sLdsB}, s3, 15")
    a(f"s_lshl_b32 s52, s25, 24")
    a("s_waitcnt lgkmcnt(0)")
    a("s_add_u32 s32, s6, s52"); a("s_addc_u32 s33, s7, 0"); a("s_and_b32 s33, s33, 0xffff"); a(f"s_mov_b32 s34, {1<<24}"); a("s_mov_b32 s35, 0x20000")
    a("s_add_u32 s36, s8, s52"); a("s_addc_u32 s37, s9, 0"); a("s_and_b32 s37, s37, 0xffff"); a(f"s_mov_b32 s38, {1<<24}"); a("s_mov_b32 s39, 0x20000")

    def adv_k():
        a(f"s_add_u32 s{sKoff}, s{sKoff}, {stride}"); a(f"s_and_b32 s{sKoff}, s{sKoff}, {MASK}")
    def adv_v():
        a(f"s_add_u32 s{sVoff}, s{sVoff}, {stride}"); a(f"s_and_b32 s{sVoff}, s{sVoff}, {MASK}")

    def load_params(i):
        if i < 16:
            t = (i >> 1) & 3; c = i & 1
            return ("K", vK0 if t < 2 else vK1, (t & 1) * 2048 + c * 128)
        n = i - 16
        return ("V", vV, (n & 7) * 256)

    def issue(I, lds=False, last_round_guard=False):
        i = I % 32
        kind, vo, io = load_params(i)
        if i == 0 and I > 0:
            adv_k()
            if last_round_guard:
                a(f"s_cmp_eq_u32 s{sCnt}, 1"); a("s_cselect_b32 s34, 0, s34")
        if i == 8: adv_k()
        if i == 16 and I > 16: adv_v()
        if i == 24: adv_v()
        srdr = "s[32:35]" if kind == "K" else "s[36:39]"
        so = sKoff if kind == "K" else sVoff
        fl = cfg.KFLAGS if kind == "K" else cfg.VFLAGS
        if lds:
            a(f"s_add_u32 m0, s{sLdsB}, {1024 * I - io}")
            a("s_nop 0")
            a(f"buffer_load_dwordx4 v{vo}, {srdr}, s{so} offen offset:{io} {fl} lds")
        else:
            r = RING + (I % 16) * 4
            a(f"buffer_load_dwordx4 {vr(r,4)}, v{vo}, {srdr}, s{so} offen offset:{io} {fl}")

    PRE = cfg.PREBAR
    assert PRE == 48
    for I in range(PRE):
        if I >= D:
            a(f"s_waitcnt vmcnt({D-1})")
            if I == D: st.mark(1)
        issue(I, lds=(I < 32))
        if I == D - 1:
            a(f"s_load_dword s24, s[22:23], {WS_E}")
            srd(a, 28, 22, 23, WS_SIZE)
            a(f"v_lshlrev_b32 v{vLds}, 4, v0"); a(f"v_add_u32 v{vLds}, s{sLdsB}, v{vLds}")
            a(f"s_mov_b32 s{sLo}, 0x00ff00ff"); a(f"s_mov_b32 s{sLo+1}, 0x00ff00ff")
            a(f"s_mov_b32 s{sHi}, 0"); a(f"s_mov_b32 s{sHi+1}, -1")
            pv_selectors(a, SEL, mode="pv", t=(8, 9, 10, 11))
            a("v_lshrrev_b32 v8, 5, v0"); a("v_lshlrev_b32 v8, 3, v8")
            a("v_bfe_u32 v9, v0, 1, 3"); a("v_add_u32 v8, v8, v9")
            a("v_lshlrev_b32 v8, 13, v8")
            a("v_and_b32 v9, 1, v0"); a("v_lshlrev_b32 v9, 5, v9")
            a("v_bfe_u32 v10, v0, 4, 1"); a("v_lshl_add_u32 v9, v10, 4, v9")
            a("v_add_u32 v8, v8, v9")
            a(f"s_lshl_b32 s53, s25, 17"); a(f"s_lshl_b32 s54, s{sU}, 7"); a("s_add_u32 s53, s53, s54"); a(f"s_add_u32 s53, s53, {WS_OP}")
            a(f"v_add_u32 v{vOadr}, s53, v8")
            a("v_lshrrev_b32 v8, 5, v0"); a("v_lshlrev_b32 v8, 10, v8")
            a(f"s_lshl_b32 s53, s25, 11"); a(f"s_lshl_b32 s54, s{sU}, 4"); a("s_add_u32 s53, s53, s54"); a(f"s_add_u32 s53, s53, {WS_ML}")
            a(f"v_add_u32 v{vMLadr}, s53, v8")
            for r in range(4): a(f"v_mov_b32 v{OO+r}, 0")
            a(f"v_mov_b32 v{L0}, 0"); a(f"v_mov_b32 v{L1}, 0")
            a(f"s_mov_b32 s{sM0}, {NEG_INF:#x}"); a(f"s_mov_b32 s{sM1}, {NEG_INF:#x}")
    st.mark(2)
    a("s_waitcnt lgkmcnt(0)")
    a("s_add_u32 s24, s24, 1")
    a("s_barrier")
    st.mark(3)
    a("v_bfe_u32 v8, v0, 1, 1"); a("v_lshlrev_b32 v8, 8, v8")
    a("v_and_b32 v9, 1, v0"); a("v_lshl_add_u32 v8, v9, 6, v8")
    a("v_lshrrev_b32 v9, 4, v0"); a("v_lshl_add_u32 v8, v9, 4, v8")
    a(f"v_add_u32 v8, {LDS_Q}, v8")
    a(f"ds_read_b128 v[12:15], v8"); a(f"ds_read_b128 v[16:19], v8 offset:128")
    for t in range(4):
        m = 0x000F000F << (4 * t)
        a(f"s_mov_b32 s{54}, {m:#x}"); a(f"s_mov_b32 s{55}, {m:#x}")
        if t == 0: a("s_waitcnt lgkmcnt(0)")
        for c in range(2):
            for d in range(4):
                a(f"v_cndmask_b32 v{AQK + (t*2+c)*4 + d}, 0, v{12 + 4*c + d}, s[54:55]")

    def mfma_k(i, breg, first):
        t = (i >> 1) & 3; c = i & 1
        dst = DA if i < 8 else DB
        A = AQK + (t * 2 + c) * 4
        cin = "0" if first else vr(dst, 4)
        a(f"v_mfma_f32_16x16x32_bf16 {vr(dst,4)}, {vr(A,4)}, {vr(breg,4)}, {cin}")

    def score_a(s0, s1):
        a(f"v_cndmask_b32 v{P0}, v{DB+1}, v{DA+0}, s[{sLo}:{sLo+1}]")
        a(f"v_cndmask_b32 v{Q0}, v{DA+1}, v{DB+0}, s[{sLo}:{sLo+1}]")
        a(f"v_cndmask_b32 v{Q1}, v{DA+3}, v{DB+2}, s[{sLo}:{sLo+1}]")
        a(f"v_cndmask_b32 v{P1}, v{DB+3}, v{DA+2}, s[{sLo}:{sLo+1}]")
        a(f"v_add_f32_dpp v{s0}, v{Q0}, v{P0} row_ror:8 row_mask:0xf bank_mask:0xf")
        a("s_nop 0")
        a(f"v_add_f32_dpp v{s1}, v{Q1}, v{P1} row_ror:8 row_mask:0xf bank_mask:0xf")
        if cfg.NOROUND:
            a(f"v_mul_f32 v{s0}, {SCALE:#x}, v{s0}")
            a(f"v_mul_f32 v{s1}, {SCALE:#x}, v{s1}")
            return
        a(f"v_cvt_pk_bf16_f32 v{T0}, v{s0}, v{s1}")
        a(f"v_lshlrev_b32 v{s0}, 16, v{T0}")
        a(f"v_and_b32 v{s1}, 0xffff0000, v{T0}")
        a(f"v_mul_f32 v{s0}, {SCALE:#x}, v{s0}")
        a(f"v_mul_f32 v{s1}, {SCALE:#x}, v{s1}")
        a(f"v_cvt_pk_bf16_f32 v{T0}, v{s0}, v{s1}")
        a(f"v_lshlrev_b32 v{s0}, 16, v{T0}")
        a(f"v_and_b32 v{s1}, 0xffff0000, v{T0}")

    def max_update(x0, x1):
        a(f"v_mov_b32 v{T0}, v{x0}"); a(f"v_mov_b32 v{T1}, v{x1}")
        allreduce(a, "v_max_f32", [T0, T1], [T2, T3])
        a(f"v_max_f32 v{T0}, s{sM0}, v{T0}"); a(f"v_max_f32 v{T1}, s{sM1}, v{T1}")
        a(f"v_sub_f32 v{T2}, s{sM0}, v{T0}"); a(f"v_sub_f32 v{T3}, s{sM1}, v{T1}")
        a(f"v_readfirstlane_b32 s{sM0}, v{T0}"); a(f"v_readfirstlane_b32 s{sM1}, v{T1}")
        a(f"v_mul_f32 v{T2}, {LOG2E:#x}, v{T2}"); a(f"v_mul_f32 v{T3}, {LOG2E:#x}, v{T3}")
        a(f"v_exp_f32 v{T2}, v{T2}"); a(f"v_exp_f32 v{T3}, v{T3}")
        a("s_nop 0")
        a(f"v_mul_f32 v{L0}, v{L0}, v{T2}"); a(f"v_mul_f32 v{L1}, v{L1}, v{T3}")
        a(f"v_cndmask_b32 v{T4}, v{T2}, v{T3}, s[{sHi}:{sHi+1}]")
        for r in range(4): a(f"v_mul_f32 v{OO+r}, v{OO+r}, v{T4}")

    def exp_b(s0, s1, pk):
        a(f"v_subrev_f32 v{s0}, s{sM0}, v{s0}"); a(f"v_subrev_f32 v{s1}, s{sM1}, v{s1}")
        a(f"v_mul_f32 v{s0}, {LOG2E:#x}, v{s0}"); a(f"v_mul_f32 v{s1}, {LOG2E:#x}, v{s1}")
        a(f"v_exp_f32 v{s0}, v{s0}"); a(f"v_exp_f32 v{s1}, v{s1}")
        a("s_nop 0")
        a(f"v_add_f32 v{L0}, v{L0}, v{s0}"); a(f"v_add_f32 v{L1}, v{L1}, v{s1}")
        a(f"v_cvt_pk_bf16_f32 v{pk}, v{s0}, v{s1}")

    def prep_v(n, pk):
        a(f"v_mov_b32_dpp v{BC}, v{pk} row_newbcast:{n} row_mask:0xf bank_mask:0xf")
        for d in range(4):
            a(f"v_perm_b32 v{APV+d}, v{BC}, v{BC}, v{SEL+d}")

    def mfma_v(breg):
        a(f"v_mfma_f32_16x16x32_bf16 {vr(OO,4)}, {vr(APV,4)}, {vr(breg,4)}, {vr(OO,4)}")

    issued = PRE
    arrived = PRE - D
    def need(idx):
        nonlocal arrived
        if idx >= arrived:
            n_after = issued - 1 - idx
            a(f"s_waitcnt vmcnt({n_after})")
            arrived = idx + 1
    def step_issue():
        nonlocal issued, arrived
        tgt = issued - D
        if tgt >= arrived:
            a(f"s_waitcnt vmcnt({D-1})")
            arrived = tgt + 1
        issue(issued)
        issued += 1
    freed = set()
    work = []
    def w_k1(i):
        return (24, lambda: mfma_k(i, RING + ((32 + i) % 16) * 4, i in (0, 8)), 32 + i, 32 + i)
    work += [w_k1(i) for i in range(16)]
    def sa1():
        a.nop(8); score_a(U0, U1)
    work.append((110, sa1, None, None))
    def k0_batch(bt):
        def f():
            for k in range(8):
                a(f"ds_read_b128 {vr(STG + 4*k, 4)}, v{vLds} offset:{1024 * (8*bt + k)}")
            for k in range(8):
                a(f"s_waitcnt lgkmcnt({7-k})")
                mfma_k(8*bt + k, STG + 4*k, (8*bt + k) in (0, 8))
        return f
    work.append((260, k0_batch(0), None, None))
    work.append((260, k0_batch(1), None, None))
    def sa0():
        a.nop(8); score_a(S0, S1)
    work.append((110, sa0, None, None))
    def mx():
        a(f"v_max_f32 v{P0}, v{S0}, v{U0}"); a(f"v_max_f32 v{P1}, v{S1}, v{U1}")
        max_update(P0, P1)
    work.append((230, mx, None, None))
    def eb():
        a.nop(1)
        exp_b(S0, S1, PK); exp_b(U0, U1, PK1)
    work.append((110, eb, None, None))
    def v0_batch(bt):
        def f():
            for k in range(4):
                a(f"ds_read_b128 {vr(STG + 4*k, 4)}, v{vLds} offset:{1024 * (16 + 4*bt + k)}")
            for k in range(4):
                prep_v(4*bt + k, PK)
                a(f"s_waitcnt lgkmcnt({3-k})")
                a("s_nop 0")
                mfma_v(STG + 4*k)
        return f
    for bt in range(4): work.append((260, v0_batch(bt), None, None))
    def w_v1(n):
        def f():
            pass
        return n
    BUDGET = 300
    wi = 0
    v1_next = 0
    target = 64 + D
    while issued < target or wi < len(work) or v1_next < 16:
        spent = 0
        while wi < len(work) and spent < BUDGET:
            cost, fn, idx, fr = work[wi]
            if idx is not None and idx >= arrived:
                if issued < target and (issued - 16) == idx:
                    need(idx)
                elif issued < target:
                    break
                else:
                    need(idx)
            fn(); spent += cost
            if fr is not None: freed.add(fr)
            wi += 1
        if wi >= len(work):
            while v1_next < 16 and spent < BUDGET and (48 + v1_next < arrived or issued >= target or (issued - 16) == 48 + v1_next):
                prep_v(v1_next, PK1)
                need(48 + v1_next)
                a("s_nop 1")
                mfma_v(RING + ((48 + v1_next) % 16) * 4)
                freed.add(48 + v1_next)
                v1_next += 1; spent += 60
        if issued < target:
            prev = issued - 16
            if prev >= 32 and prev not in freed:
                if wi < len(work):
                    continue_ok = True
                    while prev not in freed:
                        if wi < len(work):
                            cost, fn, idx, fr = work[wi]
                            if idx is not None: need(idx)
                            fn()
                            if fr is not None: freed.add(fr)
                            wi += 1
                        else:
                            prep_v(v1_next, PK1); need(48 + v1_next); a("s_nop 1")
                            mfma_v(RING + ((48 + v1_next) % 16) * 4); freed.add(48 + v1_next); v1_next += 1
                else:
                    while prev not in freed:
                        prep_v(v1_next, PK1); need(48 + v1_next); a("s_nop 1")
                        mfma_v(RING + ((48 + v1_next) % 16) * 4); freed.add(48 + v1_next); v1_next += 1
            step_issue()
    assert issued == target
    st.mark(4)
    a(f"s_mov_b32 s{sCnt}, 14")
    a.raw(".p2align 6")
    a.label("L_loop")
    for i in range(32):
        slot = RING + (i % 16) * 4
        if i >= 16:
            if i == 16: a("s_nop 1")
            prep_v(i - 16, PK)
        a(f"s_waitcnt vmcnt({D-1})")
        issue(64 + i + D if (i + D) < 32 else 96 + (i + D - 32), last_round_guard=True)
        if i < 16:
            mfma_k(i, slot, i in (0, 8))
        else:
            mfma_v(slot)
        if i == 15:
            a.nop(8)
            score_a(S0, S1)
            a(f"v_cmp_lt_f32 vcc, s{sM0}, v{S0}")
            a(f"v_cmp_lt_f32 s[54:55], s{sM1}, v{S1}")
            a("s_or_b64 vcc, vcc, s[54:55]")
            a("s_cbranch_scc1 L_rare")
            a.label("L_back")
            exp_b(S0, S1, PK)
            if cfg.TOUCH:
                a(f"v_mov_b32 v{T0}, s{sCnt}"); a(f"v_mov_b32 v{T1}, {LDS_PROG}")
                a(f"ds_write_b32 v{T1}, v{T0}")
    a(f"s_sub_u32 s{sCnt}, s{sCnt}, 1")
    a(f"s_cmp_lg_u32 s{sCnt}, 0")
    a("s_cbranch_scc1 L_loop")
    st.mark(5)
    a.nop(8)
    a(f"v_mov_b32 v{STG+0}, v{OO+0}"); a(f"v_mov_b32 v{STG+1}, s24"); a(f"v_mov_b32 v{STG+2}, v{OO+1}"); a(f"v_mov_b32 v{STG+3}, s24")
    a(f"v_mov_b32 v{STG+4}, v{OO+2}"); a(f"v_mov_b32 v{STG+5}, s24"); a(f"v_mov_b32 v{STG+6}, v{OO+3}"); a(f"v_mov_b32 v{STG+7}, s24")
    a(f"buffer_store_dwordx4 {vr(STG,4)}, v{vOadr}, s[28:31], 0 offen sc0 sc1")
    a(f"buffer_store_dwordx4 {vr(STG+4,4)}, v{vOadr}, s[28:31], 0 offen offset:64 sc0 sc1")
    allreduce(a, "v_add_f32", [L0, L1], [T2, T3])
    a(f"v_mov_b32 v{T0}, s{sM0}"); a(f"v_mov_b32 v{T1}, s{sM1}")
    a(f"v_cndmask_b32 v{STG+8}, v{T0}, v{T1}, s[{sHi}:{sHi+1}]")
    a(f"v_mov_b32 v{STG+9}, s24")
    a(f"v_cndmask_b32 v{STG+10}, v{L0}, v{L1}, s[{sHi}:{sHi+1}]")
    a(f"v_mov_b32 v{STG+11}, s24")
    a("s_mov_b32 exec_lo, 1"); a("s_mov_b32 exec_hi, 1")
    a(f"buffer_store_dwordx4 {vr(STG+8,4)}, v{vMLadr}, s[28:31], 0 offen sc0 sc1")
    a("s_mov_b64 exec, -1")
    st.mark(6)
    a("s_barrier")
    st.dump()
    a("s_endpgm")
    a.label("L_rare")
    max_update(S0, S1)
    a("s_nop 1")
    a("s_branch L_back")

    a.raw(".p2align 6")
    a.label("L_helper")
    a("s_waitcnt lgkmcnt(0)")
    a(f"s_load_dword s24, s[22:23], {WS_E}")
    srd(a, 28, 22, 23, WS_SIZE)
    a("s_cmp_eq_u32 s3, 4")
    a("s_cbranch_scc1 L_w4")
    if cfg.TOUCH:
        a("s_cmp_eq_u32 s3, 7")
        a("s_cbranch_scc0 L_not7")
        a("s_getpc_b64 s[32:33]")
        a.label("L_pc7")
        a(f"s_sub_u32 s32, s32, L_pc7-{NAME}_kernel"); a("s_subb_u32 s33, s33, 0")
        a("s_and_b32 s33, s33, 0xffff"); a(f"s_mov_b32 s34, L_codeend-{NAME}_kernel"); a("s_mov_b32 s35, 0x20000")
        a("v_lshlrev_b32 v2, 4, v0")
        a("s_mov_b32 s36, 0")
        a.label("L_t7")
        a("buffer_load_dwordx4 v[4:7], v2, s[32:35], s36 offen")
        a("s_add_u32 s36, s36, 1024"); a("s_cmp_lt_u32 s36, s34"); a("s_cbranch_scc1 L_t7")
        a.label("L_not7")
        a("s_cmp_eq_u32 s3, 6")
        a("s_cbranch_scc0 L_not6")
        a(f"v_mov_b32 v2, {LDS_PROG}"); a("v_mov_b32 v3, 99"); a("ds_write_b32 v2, v3")
        a.label("L_not6")
    a("s_branch L_gather")

    a.label("L_w4")
    srd(a, 32, 4, 5, 1152)
    srd(a, 36, 10, 11, 576 * 8192)
    a("v_lshlrev_b32 v2, 2, v0")
    for i in range(5):
        a(f"buffer_load_dword v{8+i}, v2, s[32:35], 0 offen offset:{256*i}")
    a("s_lshr_b32 s40, s2, 3"); a("s_bfe_u32 s41, s2, 0x10002"); a("s_lshl_b32 s41, s41, 5"); a("s_add_u32 s40, s40, s41")
    a("s_and_b32 s41, s2, 3")
    a(f"s_mul_i32 s42, s41, {144*8192}"); a("s_lshl_b32 s43, s40, 7"); a("s_add_u32 s42, s42, s43")
    a("v_lshrrev_b32 v3, 3, v0"); a("v_lshlrev_b32 v3, 13, v3"); a("v_and_b32 v4, 7, v0"); a("v_lshl_add_u32 v3, v4, 4, v3")
    WQ = 64
    for n in range(18):
        a(f"buffer_load_dwordx4 {vr(WQ+4*n,4)}, v3, s[36:39], s42 offen {cfg.WFLAGS}")
        if n < 17: a("s_add_u32 s42, s42, 65536")
    SELX = 16
    pv_selectors(a, SELX, mode="lo", t=(20, 21, 22, 23))
    a("s_waitcnt vmcnt(18)")
    st.mark(1)
    layernorm(a, X=8, F=24, out=8, tmp=36)
    a(f"v_lshlrev_b32 v2, 2, v0"); a(f"v_add_u32 v2, {LDS_XN}, v2")
    for i in range(5): a(f"ds_write_b32 v2, v{8+i} offset:{256*i}")
    a("s_mul_i32 s42, s41, 288"); a(f"s_add_u32 s42, s42, {LDS_XN}")
    a("v_lshrrev_b32 v2, 3, v0"); a("v_lshlrev_b32 v2, 1, v2"); a("v_add_u32 v2, s42, v2")
    a("s_waitcnt lgkmcnt(0)")
    XV = 24
    for n in range(18): a(f"ds_read_u16 v{XV+n}, v2 offset:{16*n}")
    st.mark(2)
    AX = 44; DQ = 52
    a("s_waitcnt lgkmcnt(0)")
    for n in range(18):
        A = AX + 4 * (n & 1)
        for d in range(4): a(f"v_perm_b32 v{A+d}, v{XV+n}, v{XV+n}, v{SELX+d}")
        a(f"s_waitcnt vmcnt({17-n})")
        a("s_nop 0")
        a(f"v_mfma_f32_16x16x32_bf16 {vr(DQ,4)}, {vr(A,4)}, {vr(WQ+4*n,4)}, {'0' if n == 0 else vr(DQ,4)}")
    a.nop(8)
    fold40(a, [DQ+r for r in range(4)], [56, 57, 58, 59])
    a("s_waitcnt lgkmcnt(0)")
    a("s_add_u32 s24, s24, 1")
    a("s_lshl_b32 s42, s40, 2"); a("s_add_u32 s42, s42, s41"); a("s_lshl_b32 s42, s42, 9"); a(f"s_add_u32 s42, s42, {WS_QP}")
    a("v_and_b32 v2, 7, v0"); a("v_lshlrev_b32 v2, 6, v2"); a("v_lshrrev_b32 v3, 4, v0"); a("v_lshl_add_u32 v2, v3, 5, v2")
    a(f"v_mov_b32 v60, v{DQ}"); a("v_mov_b32 v61, s24"); a(f"v_mov_b32 v62, v{DQ+1}"); a("v_mov_b32 v63, s24")
    a(f"v_mov_b32 v44, v{DQ+2}"); a("v_mov_b32 v45, s24"); a(f"v_mov_b32 v46, v{DQ+3}"); a("v_mov_b32 v47, s24")
    a("s_mov_b32 exec_lo, 0x00ff00ff"); a("s_mov_b32 exec_hi, 0")
    a("buffer_store_dwordx4 v[60:63], v2, s[28:31], s42 offen sc0 sc1")
    a("buffer_store_dwordx4 v[44:47], v2, s[28:31], s42 offen offset:16 sc0 sc1")
    a("s_mov_b64 exec, -1")
    st.mark(3)
    a("s_branch L_gather2")

    a.label("L_gather")
    a("s_waitcnt lgkmcnt(0)")
    a("s_add_u32 s24, s24, 1")
    a.label("L_gather2")
    a("s_lshl_b32 s42, s25, 2"); a("s_add_u32 s42, s42, s3"); a("s_sub_u32 s42, s42, 4"); a("s_lshl_b32 s42, s42, 11"); a(f"s_add_u32 s42, s42, {WS_QP}")
    a("v_lshlrev_b32 v2, 3, v0")
    a(f"s_mov_b32 s43, {cfg.SPIN_MAX}")
    a.label("L_gpoll")
    for b in range(4):
        a(f"buffer_load_dwordx2 v[{8+2*b}:{9+2*b}], v2, s[28:31], s42 offen offset:{512*b} sc1")
    a("s_waitcnt vmcnt(0)")
    a("v_cmp_eq_u32 vcc, s24, v9"); a("v_cmp_eq_u32 s[44:45], s24, v11"); a("v_cmp_eq_u32 s[46:47], s24, v13"); a("v_cmp_eq_u32 s[48:49], s24, v15")
    a("s_and_b64 vcc, vcc, s[44:45]"); a("s_and_b64 s[46:47], s[46:47], s[48:49]"); a("s_and_b64 vcc, vcc, s[46:47]")
    a("s_cmp_eq_u64 vcc, -1")
    a("s_cbranch_scc1 L_gdone")
    spin_guard(a, 43, "L_gdone")
    a("s_sleep 2")
    a("s_branch L_gpoll")
    a.label("L_gdone")
    a("v_add_f32 v8, v8, v10"); a("v_add_f32 v8, v8, v12"); a("v_add_f32 v8, v8, v14")
    a("v_cvt_pk_bf16_f32 v8, v8, v8")
    a("s_sub_u32 s42, s3, 4"); a("s_lshl_b32 s42, s42, 7"); a(f"s_add_u32 s42, s42, {LDS_Q}")
    a("v_lshlrev_b32 v2, 1, v0"); a("v_add_u32 v2, s42, v2")
    a("ds_write_b16 v2, v8")
    a("s_waitcnt lgkmcnt(0)")
    st.mark(4)
    a("s_barrier")
    a("s_cmp_eq_u32 s3, 4"); a("s_cbranch_scc1 L_w4b")
    a("s_cmp_eq_u32 s3, 5"); a("s_cbranch_scc1 L_ffn")
    if cfg.TOUCH:
        a("s_cmp_eq_u32 s3, 6"); a("s_cbranch_scc1 L_w6")
    st.dump()
    a("s_endpgm")

    if cfg.TOUCH:
        a.label("L_w6")
        a(f"v_mov_b32 v2, {LDS_PROG}")
        a(f"s_mov_b32 s43, {cfg.SPIN_MAX}")
        a.label("L_w6poll")
        a("ds_read_b32 v3, v2"); a("s_waitcnt lgkmcnt(0)"); a("v_readfirstlane_b32 s44, v3")
        a("s_cmp_le_u32 s44, 2"); a("s_cbranch_scc1 L_w6go")
        spin_guard(a, 43, "L_w6go")
        a("s_sleep 16")
        a("s_branch L_w6poll")
        a.label("L_w6go")
        a("s_getpc_b64 s[32:33]")
        a.label("L_pc6")
        a(f"s_add_u32 s32, s32, L_tail-L_pc6"); a("s_addc_u32 s33, s33, 0")
        a("s_and_b32 s33, s33, 0xffff"); a(f"s_mov_b32 s34, L_codeend-L_tail"); a("s_mov_b32 s35, 0x20000")
        a("v_lshlrev_b32 v2, 4, v0")
        a("s_mov_b32 s36, 0")
        a.label("L_t6")
        a("buffer_load_dwordx4 v[4:7], v2, s[32:35], s36 offen")
        a("s_add_u32 s36, s36, 1024"); a("s_cmp_lt_u32 s36, s34"); a("s_cbranch_scc1 L_t6")
        a("s_endpgm")

    a.label("L_ffn")
    a("s_cmp_ge_u32 s2, 72"); a("s_cbranch_scc1 L_ffn_end")
    gen_ffn(a, cfg, st)
    a.label("L_ffn_end")
    st.dump()
    a("s_endpgm")

    a.label("L_w4b")
    gen_w4b(a, cfg, st)

    a.label("L_end")
    a("s_endpgm")
    a.label("L_codeend")
    a.raw(".section .rodata,\"a\"")
    a.raw(".p2align 6")
    a.raw(f".amdhsa_kernel {NAME}_kernel")
    a.raw("  .amdhsa_next_free_vgpr 256")
    a.raw("  .amdhsa_next_free_sgpr 102")
    a.raw("  .amdhsa_accum_offset 256")
    a.raw("  .amdhsa_group_segment_fixed_size 0")
    a.raw("  .amdhsa_kernarg_size 88")
    a.raw("  .amdhsa_user_sgpr_count 2")
    a.raw("  .amdhsa_user_sgpr_kernarg_segment_ptr 1")
    a.raw("  .amdhsa_system_sgpr_workgroup_id_x 1")
    a.raw("  .amdhsa_float_denorm_mode_32 3")
    a.raw("  .amdhsa_float_denorm_mode_16_64 3")
    a.raw(".end_amdhsa_kernel")
    return a.text()

def pv_selectors(a, SEL, mode, t):
    t0, t1, t2, t3 = t
    if mode == "pv":
        a(f"v_bfe_u32 v{t0}, v0, 3, 1"); a(f"v_lshlrev_b32 v{t0}, 1, v{t0}")
    elif mode == "lo":
        a(f"v_mov_b32 v{t0}, 0")
    elif mode == "wo":
        a(f"v_bfe_u32 v{t0}, v0, 4, 1"); a(f"v_lshlrev_b32 v{t0}, 1, v{t0}")
    a(f"v_add_u32 v{t1}, 1, v{t0}"); a(f"v_lshl_or_b32 v{t0}, v{t1}, 8, v{t0}")
    a(f"v_or_b32 v{t1}, 0x0c0c0000, v{t0}")
    a(f"v_lshlrev_b32 v{t2}, 16, v{t0}"); a(f"v_or_b32 v{t2}, 0x0c0c, v{t2}")
    a(f"v_and_b32 v{t3}, 1, v0"); a(f"v_cmp_eq_u32 vcc, 1, v{t3}")
    a("s_nop 1")
    a(f"v_cndmask_b32 v{t0}, v{t1}, v{t2}, vcc")
    a(f"v_bfe_u32 v{t3}, v0, 1, 2")
    if mode == "wo":
        a(f"v_bfe_u32 v{t2}, v0, 3, 1"); a(f"v_lshl_or_b32 v{t3}, v{t2}, 2, v{t3}")
    a(f"v_mov_b32 v{t1}, 0x0c0c0c0c")
    for d in range(4):
        a(f"v_cmp_eq_u32 vcc, {d}, v{t3}")
        a("s_nop 1")
        a(f"v_cndmask_b32 v{SEL+d}, v{t1}, v{t0}, vcc")

def div_uniform(a, q, num, den, r, e):
    a(f"v_mul_f32 v{q}, v{num}, v{r}")
    a(f"v_fma_f32 v{e}, -v{q}, v{den}, v{num}")
    a(f"v_fma_f32 v{q}, v{e}, v{r}, v{q}")

def recip(a, r, den, e):
    a(f"v_rcp_f32 v{r}, v{den}")
    a("s_nop 0")
    a(f"v_fma_f32 v{e}, -v{den}, v{r}, 1.0")
    a(f"v_fma_f32 v{r}, v{e}, v{r}, v{r}")

def layernorm(a, X, F, out, tmp):
    t = tmp
    for i in range(5):
        a(f"v_lshlrev_b32 v{F+2*i}, 16, v{X+i}"); a(f"v_and_b32 v{F+2*i+1}, 0xffff0000, v{X+i}")
    S = t; T = t + 1; N = t + 2; R = t + 3; E = t + 4; M = t + 5; DEN = t + 6; A = t + 7
    a(f"v_add_f32 v{S}, v{F}, v{F+1}")
    for i in range(2, 10): a(f"v_add_f32 v{S}, v{S}, v{F+i}")
    allreduce(a, "v_add_f32", [S], [T])
    a(f"v_mov_b32 v{N}, 0x44100000")
    recip(a, R, N, E)
    div_uniform(a, M, S, N, R, E)
    a(f"v_mov_b32 v{S}, 0")
    for i in range(8):
        a(f"v_sub_f32 v{T}, v{F+i}, v{M}"); a(f"v_fma_f32 v{S}, v{T}, v{T}, v{S}")
    a("s_mov_b32 exec_hi, 0")
    for i in range(8, 10):
        a(f"v_sub_f32 v{T}, v{F+i}, v{M}"); a(f"v_fma_f32 v{S}, v{T}, v{T}, v{S}")
    a("s_mov_b32 exec_hi, -1")
    allreduce(a, "v_add_f32", [S], [T])
    div_uniform(a, A, S, N, R, E)
    a(f"v_cvt_pk_bf16_f32 v{T}, v{A}, v{M}")
    a(f"v_lshlrev_b32 v{A}, 16, v{T}"); a(f"v_and_b32 v{M}, 0xffff0000, v{T}")
    a(f"v_add_f32 v{A}, 0x3727c5ac, v{A}")
    a(f"v_cvt_pk_bf16_f32 v{T}, v{A}, v{A}"); a(f"v_lshlrev_b32 v{A}, 16, v{T}")
    a(f"v_sqrt_f32 v{A}, v{A}")
    a("s_nop 0")
    a(f"v_cvt_pk_bf16_f32 v{T}, v{A}, v{A}"); a(f"v_lshlrev_b32 v{DEN}, 16, v{T}")
    recip(a, R, DEN, E)
    for i in range(5):
        x0, x1 = F + 2*i, F + 2*i + 1
        a(f"v_sub_f32 v{x0}, v{x0}, v{M}"); a(f"v_sub_f32 v{x1}, v{x1}, v{M}")
        a(f"v_cvt_pk_bf16_f32 v{T}, v{x0}, v{x1}")
        a(f"v_lshlrev_b32 v{x0}, 16, v{T}"); a(f"v_and_b32 v{x1}, 0xffff0000, v{T}")
        a(f"v_mul_f32 v{S}, v{x0}, v{R}"); a(f"v_mul_f32 v{A}, v{x1}, v{R}")
        a(f"v_fma_f32 v{E}, -v{S}, v{DEN}, v{x0}"); a(f"v_fma_f32 v{N}, -v{A}, v{DEN}, v{x1}")
        a(f"v_fma_f32 v{S}, v{E}, v{R}, v{S}"); a(f"v_fma_f32 v{A}, v{N}, v{R}, v{A}")
        a(f"v_cvt_pk_bf16_f32 v{out+i}, v{S}, v{A}")

def fold40(a, regs, tmps):
    for r, t in zip(regs, tmps): a(f"v_mov_b32 v{t}, v{r}")
    a.nop(2)
    for r, t in zip(regs, tmps): a(f"v_permlane32_swap_b32 v{r}, v{t}")
    a.nop(2)
    for r, t in zip(regs, tmps):
        a(f"v_add_f32_dpp v{r}, v{t}, v{r} row_ror:8 row_mask:0xf bank_mask:0xf")

def gen_ffn(a, cfg, st):
    st.mark(5)
    srd(a, 32, 16, 17, 576 * 9216)
    srd(a, 36, 18, 19, 4608 * 1152)
    SEL = 16
    pv_selectors(a, SEL, mode="lo", t=(20, 21, 22, 23))
    a("v_lshrrev_b32 v3, 3, v0"); a("v_mul_u32_u24 v3, 9216, v3"); a("v_and_b32 v4, 7, v0"); a("v_lshl_add_u32 v3, v4, 4, v3")
    a("s_lshl_b32 s40, s2, 7")
    R = 64
    for j in range(8):
        a(f"buffer_load_dwordx4 {vr(R+4*j,4)}, v3, s[32:35], s40 offen {cfg.WFLAGS}")
        a(f"s_add_u32 s40, s40, {8*9216}")
    a("v_lshrrev_b32 v2, 3, v0"); a("v_lshlrev_b32 v2, 1, v2"); a(f"v_add_u32 v2, {LDS_XN}, v2")
    DH = 24; XV = 28; AX = 40
    for r in range(4): a(f"v_mov_b32 v{DH+r}, 0")
    a("s_mov_b32 s41, 9")
    a.label("L_f1")
    for j in range(8): a(f"ds_read_u16 v{XV+j}, v2 offset:{16*j}")
    a("v_add_u32 v2, 128, v2")
    a("s_waitcnt lgkmcnt(0)")
    for j in range(8):
        A = AX + 4 * (j & 1)
        for d in range(4): a(f"v_perm_b32 v{A+d}, v{XV+j}, v{XV+j}, v{SEL+d}")
        a("s_waitcnt vmcnt(7)")
        a("s_nop 0")
        a(f"v_mfma_f32_16x16x32_bf16 {vr(DH,4)}, {vr(A,4)}, {vr(R+4*j,4)}, {vr(DH,4)}")
        a(f"buffer_load_dwordx4 {vr(R+4*j,4)}, v3, s[32:35], s40 offen {cfg.WFLAGS}")
        a(f"s_add_u32 s40, s40, {8*9216}")
    a("s_sub_u32 s41, s41, 1"); a("s_cmp_lg_u32 s41, 0"); a("s_cbranch_scc1 L_f1")
    a("s_waitcnt vmcnt(0)")
    a("v_lshrrev_b32 v3, 3, v0"); a("v_mul_u32_u24 v3, 1152, v3"); a("v_and_b32 v4, 7, v0"); a("v_lshl_add_u32 v3, v4, 4, v3")
    a(f"s_mul_i32 s40, s2, {64*1152}")
    for cb in range(9):
        a(f"buffer_load_dwordx4 {vr(R+4*cb,4)}, v3, s[36:39], s40 offen offset:{128*cb} {cfg.WFLAGS}")
    a(f"s_add_u32 s40, s40, {8*1152}")
    a.nop(8)
    fold40(a, [DH+r for r in range(4)], [48, 49, 50, 51])
    a(f"v_cvt_pk_bf16_f32 v48, v{DH}, v{DH+1}"); a(f"v_cvt_pk_bf16_f32 v49, v{DH+2}, v{DH+3}")
    a(f"v_lshlrev_b32 v{DH}, 16, v48"); a(f"v_and_b32 v{DH+1}, 0xffff0000, v48")
    a(f"v_lshlrev_b32 v{DH+2}, 16, v49"); a(f"v_and_b32 v{DH+3}, 0xffff0000, v49")
    for r in range(4):
        a(f"v_mul_f32 v{52+r}, 0xbfb8aa3b, v{DH+r}")
    for r in range(4): a(f"v_exp_f32 v{52+r}, v{52+r}")
    a("s_nop 0")
    for r in range(4): a(f"v_add_f32 v{52+r}, 1.0, v{52+r}")
    for r in range(4): a(f"v_min_f32 v{52+r}, 0x7e967699, v{52+r}")
    for r in range(4):
        recip(a, 56, 52 + r, 57)
        div_uniform(a, 58, DH + r, 52 + r, 56, 57)
        a(f"v_mov_b32 v{DH+r}, v58")
    a(f"v_cvt_pk_bf16_f32 v48, v{DH}, v{DH+1}"); a(f"v_cvt_pk_bf16_f32 v49, v{DH+2}, v{DH+3}")
    a("v_and_b32 v2, 7, v0"); a("v_lshlrev_b32 v2, 4, v2"); a("v_lshrrev_b32 v4, 4, v0"); a("v_lshl_add_u32 v2, v4, 3, v2"); a(f"v_add_u32 v2, {LDS_H}, v2")
    a("s_mov_b32 exec_lo, 0x00ff00ff"); a("s_mov_b32 exec_hi, 0")
    a("ds_write_b64 v2, v[48:49]")
    a("s_mov_b64 exec, -1")
    a("s_waitcnt lgkmcnt(0)")
    a("v_lshrrev_b32 v2, 3, v0"); a("v_lshlrev_b32 v2, 1, v2"); a(f"v_add_u32 v2, {LDS_H}, v2")
    ACC = 128
    for r in range(36): a(f"v_mov_b32 v{ACC+r}, 0")
    a("s_mov_b32 s41, 8")
    a.label("L_f2")
    a(f"ds_read_u16 v{XV}, v2")
    a("v_add_u32 v2, 16, v2")
    a("s_waitcnt lgkmcnt(0)")
    for d in range(4): a(f"v_perm_b32 v{AX+d}, v{XV}, v{XV}, v{SEL+d}")
    a("s_cmp_eq_u32 s41, 1"); a("s_cselect_b32 s38, 0, s38")
    for cb in range(9):
        a("s_waitcnt vmcnt(8)")
        if cb == 0: a("s_nop 0")
        a(f"v_mfma_f32_16x16x32_bf16 {vr(ACC+4*cb,4)}, {vr(AX,4)}, {vr(R+4*cb,4)}, {vr(ACC+4*cb,4)}")
        a(f"buffer_load_dwordx4 {vr(R+4*cb,4)}, v3, s[36:39], s40 offen offset:{128*cb} {cfg.WFLAGS}")
    a(f"s_add_u32 s40, s40, {8*1152}")
    a("s_sub_u32 s41, s41, 1"); a("s_cmp_lg_u32 s41, 0"); a("s_cbranch_scc1 L_f2")
    a("s_waitcnt vmcnt(0)")
    a.nop(8)
    for cb in range(9):
        fold40(a, [ACC+4*cb+r for r in range(4)], [48, 49, 50, 51])
    a("v_and_b32 v2, 7, v0"); a(f"v_mul_u32_u24 v2, {72*64}, v2"); a("v_lshrrev_b32 v4, 4, v0"); a("v_lshl_add_u32 v2, v4, 4, v2")
    a("s_lshl_b32 s40, s2, 6"); a(f"s_add_u32 s40, s40, {WS_BP}")
    a("s_mov_b32 exec_lo, 0x00ff00ff"); a("s_mov_b32 exec_hi, 0")
    a("v_mov_b32 v49, s24"); a("v_mov_b32 v51, s24"); a("v_mov_b32 v53, s24"); a("v_mov_b32 v55, s24")
    for cb in range(9):
        a(f"v_mov_b32 v48, v{ACC+4*cb}"); a(f"v_mov_b32 v50, v{ACC+4*cb+1}")
        a(f"v_mov_b32 v52, v{ACC+4*cb+2}"); a(f"v_mov_b32 v54, v{ACC+4*cb+3}")
        a("buffer_store_dwordx4 v[48:51], v2, s[28:31], s40 offen sc0 sc1")
        a("buffer_store_dwordx4 v[52:55], v2, s[28:31], s40 offen offset:32 sc0 sc1")
        a(f"s_add_u32 s40, s40, {8*72*64}")
        a("s_nop 1")
    a("s_mov_b64 exec, -1")
    st.mark(6)

def check_tags(a, tagregs, t0, t1, ok_label, mask_s=None):
    regs = list(tagregs)
    a(f"v_min_u32 v{t0}, v{regs[0]}, v{regs[1]}"); a(f"v_max_u32 v{t1}, v{regs[0]}, v{regs[1]}")
    i = 2
    while i + 1 < len(regs):
        a(f"v_min3_u32 v{t0}, v{t0}, v{regs[i]}, v{regs[i+1]}"); a(f"v_max3_u32 v{t1}, v{t1}, v{regs[i]}, v{regs[i+1]}")
        i += 2
    if i < len(regs):
        a(f"v_min_u32 v{t0}, v{t0}, v{regs[i]}"); a(f"v_max_u32 v{t1}, v{t1}, v{regs[i]}")
    a(f"v_cmp_eq_u32 vcc, s24, v{t0}"); a(f"v_cmp_eq_u32 s[44:45], s24, v{t1}")
    a("s_and_b64 vcc, vcc, s[44:45]")
    a("s_cmp_eq_u64 vcc, -1")
    a(f"s_cbranch_scc1 {ok_label}")

def reduce_groups(a, regs, tmps, rors):
    allreduce(a, "v_add_f32", regs, tmps, rors=rors)

def gen_w4b(a, cfg, st):
    srd(a, 32, 12, 13, 4096 * 1152)
    a("s_lshl_b32 s40, s25, 8"); a("s_lshl_b32 s41, s26, 4"); a("s_add_u32 s40, s40, s41"); a("s_mul_i32 s40, s40, 1152")
    a("v_lshrrev_b32 v3, 4, v0"); a("v_mul_u32_u24 v3, 1152, v3"); a("v_and_b32 v4, 15, v0"); a("v_lshl_add_u32 v3, v4, 4, v3")
    a("v_cmp_gt_u32 vcc, 8, v4"); a("v_bfrev_b32 v5, 1"); a("s_nop 0"); a("v_cndmask_b32 v4, v5, v3, vcc")
    WO = 64
    for rb in range(4):
        for cb in range(5):
            vo = 3 if cb < 4 else 4
            a(f"buffer_load_dwordx4 {vr(WO+4*(rb*5+cb),4)}, v{vo}, s[32:35], s40 offen offset:{256*cb} {cfg.WFLAGS}")
        a(f"s_add_u32 s40, s40, {4*1152}")
    SELW = 16
    pv_selectors(a, SELW, mode="wo", t=(20, 21, 22, 23))
    vML, vO, vAP, vFin = 6, 7, 8, 9
    a("s_lshl_b32 s41, s25, 1"); a("s_lshr_b32 s42, s26, 3"); a("s_add_u32 s41, s41, s42"); a("s_lshl_b32 s41, s41, 10"); a(f"s_add_u32 s41, s41, {WS_ML}")
    a(f"v_lshlrev_b32 v{vML}, 4, v0"); a(f"v_add_u32 v{vML}, s41, v{vML}")
    a("s_lshl_b32 s41, s25, 4"); a("s_add_u32 s41, s41, s26"); a("s_lshl_b32 s41, s41, 13"); a(f"s_add_u32 s41, s41, {WS_OP}")
    a(f"v_lshlrev_b32 v{vO}, 4, v0"); a(f"v_add_u32 v{vO}, s41, v{vO}")
    a(f"v_and_b32 v{vAP}, 15, v0"); a(f"v_lshlrev_b32 v{vAP}, 14, v{vAP}"); a("v_bfe_u32 v10, v0, 4, 1"); a(f"v_lshl_add_u32 v{vAP}, v10, 4, v{vAP}")
    a("s_lshl_b32 s41, s2, 6"); a(f"s_add_u32 s41, s41, {WS_AP}"); a(f"v_add_u32 v{vAP}, s41, v{vAP}")
    vBP = 10
    a(f"v_lshrrev_b32 v{vBP}, 3, v0"); a(f"v_lshlrev_b32 v{vBP}, 2, v{vBP}")
    BS0, BS1, XC = 12, 13, 14
    a("s_cmp_lt_u32 s2, 184")
    a("s_cbranch_scc1 L_nofin1")
    a("s_sub_u32 s50, s2, 184")
    srd(a, 36, 4, 5, 1152)
    a("v_and_b32 v24, 1, v0"); a("v_lshlrev_b32 v24, 3, v24"); a("v_bfe_u32 v25, v0, 1, 1"); a("v_lshl_add_u32 v24, v25, 2, v24")
    a("s_lshl_b32 s51, s50, 4"); a("v_add_u32 v24, s51, v24")
    a(f"v_mov_b32 v{vFin}, v24")
    a(f"buffer_load_dword v{XC}, v24, s[36:39], 0 offen")
    a(f"s_mul_i32 s51, s50, {72*64}"); a(f"s_add_u32 s51, s51, {WS_BP}")
    a("v_lshlrev_b32 v25, 4, v0"); a("v_add_u32 v25, s51, v25")
    PB = 160
    a(f"v_mov_b32 v{PB+16}, 0"); a(f"v_mov_b32 v{PB+17}, s24"); a(f"v_mov_b32 v{PB+18}, 0"); a(f"v_mov_b32 v{PB+19}, s24")
    a(f"s_mov_b32 s43, {cfg.SPIN_MAX}")
    a.label("L_bpoll")
    for i in range(4):
        a(f"buffer_load_dwordx4 {vr(PB+4*i,4)}, v25, s[28:31], 0 offen offset:{1024*i} sc1")
    a("v_add_u32 v26, 4096, v25")
    a("s_mov_b32 exec_hi, 0")
    a(f"buffer_load_dwordx4 {vr(PB+16,4)}, v26, s[28:31], 0 offen sc1")
    a("s_mov_b32 exec_hi, -1")
    a("s_waitcnt vmcnt(0)")
    check_tags(a, [PB+4*i+k for i in range(5) for k in (1, 3)], 27, 28, "L_bdone")
    spin_guard(a, 43, "L_bdone")
    a("s_sleep 64")
    a("s_branch L_bpoll")
    a.label("L_bdone")
    a(f"v_add_f32 v{BS0}, v{PB}, v{PB+4}"); a(f"v_add_f32 v{BS1}, v{PB+2}, v{PB+6}")
    for i in range(2, 5):
        a(f"v_add_f32 v{BS0}, v{BS0}, v{PB+4*i}"); a(f"v_add_f32 v{BS1}, v{BS1}, v{PB+4*i+2}")
    reduce_groups(a, [BS0, BS1], [27, 28], (4, 8))
    a(f"v_cvt_pk_bf16_f32 v27, v{BS0}, v{BS1}")
    a(f"v_lshlrev_b32 v{BS0}, 16, v27"); a(f"v_and_b32 v{BS1}, 0xffff0000, v27")
    a.label("L_nofin1")
    a("s_waitcnt vmcnt(0)")
    st.mark(5)
    a("s_barrier")
    a.label("L_tail")
    st.mark(6)
    ML = 160
    a(f"s_mov_b32 s43, {cfg.SPIN_MAX}")
    a.label("L_mlpoll")
    a(f"buffer_load_dwordx4 {vr(ML,4)}, v{vML}, s[28:31], 0 offen sc1")
    a("s_waitcnt vmcnt(0)")
    check_tags(a, [ML+1, ML+3], 27, 28, "L_mldone")
    spin_guard(a, 43, "L_mldone")
    a("s_sleep 4")
    a("s_branch L_mlpoll")
    a.label("L_mldone")
    st.mark(7)
    OD = 168
    def oloads():
        for i in range(8):
            if i < 4: a(f"buffer_load_dwordx4 {vr(OD+4*i,4)}, v{vO}, s[28:31], 0 offen offset:{1024*i} sc1")
            else:
                if i == 4: a(f"v_add_u32 v29, 4096, v{vO}")
                a(f"buffer_load_dwordx4 {vr(OD+4*i,4)}, v29, s[28:31], 0 offen offset:{1024*(i-4)} sc1")
    oloads()
    a(f"v_mov_b32 v30, v{ML}")
    allreduce(a, "v_max_f32", [30], [31])
    a(f"v_sub_f32 v30, v{ML}, v30"); a(f"v_mul_f32 v30, {LOG2E:#x}, v30"); a("v_exp_f32 v30, v30")
    a("s_nop 0")
    a(f"v_mul_f32 v32, v30, v{ML+2}")
    allreduce(a, "v_add_f32", [32], [31])
    recip(a, 33, 32, 31)
    div_uniform(a, 34, 30, 32, 33, 31)
    WV = 36
    for i in range(8):
        a(f"v_add_u32 v35, {32*i}, v{vBP}")
        a(f"ds_bpermute_b32 v{WV+i}, v35, v34")
    a(f"s_mov_b32 s43, {cfg.SPIN_MAX}")
    a.label("L_opoll")
    a("s_waitcnt vmcnt(0)")
    check_tags(a, [OD+4*i+k for i in range(8) for k in (1, 3)], 27, 28, "L_odone")
    spin_guard(a, 43, "L_odone")
    oloads()
    a("s_branch L_opoll")
    a.label("L_odone")
    st.mark(8)
    a("s_waitcnt lgkmcnt(0)")
    a(f"v_mul_f32 v44, v{WV}, v{OD}"); a(f"v_mul_f32 v45, v{WV}, v{OD+2}")
    for i in range(1, 8):
        a(f"v_fma_f32 v44, v{WV+i}, v{OD+4*i}, v44"); a(f"v_fma_f32 v45, v{WV+i}, v{OD+4*i+2}, v45")
    reduce_groups(a, [44, 45], [27, 28], (8,))
    a("v_cvt_pk_bf16_f32 v46, v44, v45")
    AW = 48; ACC = 200
    for rb in range(4):
        A = AW + 4 * rb
        if rb == 0: a.nop(2)
        a(f"v_mov_b32_dpp v47, v46 row_newbcast:{rb} row_mask:0x3 bank_mask:0xf")
        a(f"v_mov_b32_dpp v47, v46 row_newbcast:{4+rb} row_mask:0xc bank_mask:0xf")
        for d in range(4): a(f"v_perm_b32 v{A+d}, v47, v47, v{SELW+d}")
    a.nop(2)
    for rb in range(4):
        for cb in range(5):
            a(f"v_mfma_f32_16x16x32_bf16 {vr(ACC+4*cb,4)}, {vr(AW+4*rb,4)}, {vr(WO+4*(rb*5+cb),4)}, {'0' if rb == 0 else vr(ACC+4*cb,4)}")
    ST = 224
    for k in range(4): a(f"v_mov_b32 v{ST+2*k+1}, s24")
    for k in range(4): a(f"v_mov_b32 v{ST+8+2*k+1}, s24")
    a("s_mov_b32 exec_hi, 0")
    a.nop(4)
    for cb in range(5):
        S = ST + 8 * (cb & 1)
        if cb == 4: a("s_mov_b32 exec_lo, 0x00ff00ff")
        for r in range(4): a(f"v_mov_b32 v{S+2*r}, v{ACC+4*cb+r}")
        so = 16 * cb * 256 * 64
        a(f"s_mov_b32 s41, {so}")
        a(f"buffer_store_dwordx4 {vr(S,4)}, v{vAP}, s[28:31], s41 offen sc0 sc1")
        a(f"buffer_store_dwordx4 {vr(S+4,4)}, v{vAP}, s[28:31], s41 offen offset:32 sc0 sc1")
    a("s_mov_b64 exec, -1")
    st.mark(9)
    a("s_cmp_lt_u32 s2, 184")
    a("s_cbranch_scc1 L_w4end")
    a(f"s_lshl_b32 s51, s50, 14"); a(f"s_add_u32 s51, s51, {WS_AP}")
    a("v_lshlrev_b32 v25, 4, v0"); a("v_add_u32 v25, s51, v25")
    for k in range(1, 4): a(f"v_add_u32 v{24+k+4}, {4096*k}, v25")
    PA = 64
    a(f"s_mov_b32 s43, {cfg.SPIN_MAX}")
    a.label("L_apoll")
    for i in range(16):
        vo = 25 if i < 4 else 28 + (i // 4)
        a(f"buffer_load_dwordx4 {vr(PA+4*i,4)}, v{vo}, s[28:31], 0 offen offset:{1024*(i%4)} sc1")
    a("s_waitcnt vmcnt(0)")
    check_tags(a, [PA+4*i+k for i in range(16) for k in (1, 3)], 27, 26, "L_adone")
    spin_guard(a, 43, "L_adone")
    a("s_branch L_apoll")
    a.label("L_adone")
    st.mark(10)
    a(f"v_add_f32 v44, v{PA}, v{PA+4}"); a(f"v_add_f32 v45, v{PA+2}, v{PA+6}")
    for i in range(2, 16):
        a(f"v_add_f32 v44, v44, v{PA+4*i}"); a(f"v_add_f32 v45, v45, v{PA+4*i+2}")
    reduce_groups(a, [44, 45], [27, 26], (4, 8))
    a("v_cvt_pk_bf16_f32 v46, v44, v45")
    a("v_lshlrev_b32 v44, 16, v46"); a("v_and_b32 v45, 0xffff0000, v46")
    a(f"v_lshlrev_b32 v47, 16, v{XC}"); a(f"v_and_b32 v48, 0xffff0000, v{XC}")
    a("v_add_f32 v44, v47, v44"); a("v_add_f32 v45, v48, v45")
    a("v_cvt_pk_bf16_f32 v46, v44, v45")
    a("v_lshlrev_b32 v44, 16, v46"); a("v_and_b32 v45, 0xffff0000, v46")
    a(f"v_add_f32 v44, v44, v{BS0}"); a(f"v_add_f32 v45, v45, v{BS1}")
    a("v_cvt_pk_bf16_f32 v46, v44, v45")
    srd(a, 36, 20, 21, 1152)
    a("s_mov_b64 exec, 0xf")
    a(f"buffer_store_dword v46, v{vFin}, s[36:39], 0 offen")
    a("s_cmp_eq_u32 s50, 0")
    a("s_cbranch_scc0 L_noE")
    a("s_mov_b64 exec, 1")
    a("v_mov_b32 v47, s24"); a(f"v_mov_b32 v48, {WS_E}")
    a("buffer_store_dword v47, v48, s[28:31], 0 offen sc0 sc1")
    a.label("L_noE")
    a("s_mov_b64 exec, -1")
    st.mark(11)
    a.label("L_w4end")
    st.dump()
    a("s_endpgm")

if __name__ == "__main__":
    import argparse
    ap = argparse.ArgumentParser()
    ap.add_argument("-o", default="out.s")
    ap.add_argument("--set", action="append", default=[])
    args = ap.parse_args()
    cfg = Cfg()
    for kv in args.set:
        k, v = kv.split("=", 1)
        old = getattr(cfg, k)
        if isinstance(old, bool): v = v in ("1", "True", "true")
        elif isinstance(old, int): v = int(v, 0)
        setattr(cfg, k, v)
    open(args.o, "w").write(gen(cfg))
```

```python
import sys
from asmlib import Asm, vr, sr

NAME = "parallel_sum__gqa_block_cached__dense_activation_silu__decode"
NWG = 256

LDS_X = 0
LDS_XN = 131072
LDS_Q = LDS_XN + 1280
LDS_H = LDS_Q + 512
LDS_PROG = LDS_H + 128
LDS_F0 = LDS_PROG + 4
LDS_F1 = LDS_PROG + 8
LDS_TOTAL = 133120

WS_E = 0
WS_QP = 0x1000
WS_ML = 0x40000
WS_HP = 0x50000
WS_OP = 0x100000
WS_AP = 0x400000
WS_BP = 0x540000
WS_DIAG = 0x680000
WS_SIZE = 0x700000

SCALE = 0x3DB504F3
LOG2E = 0x3FB8AA3B
NEG_INF = 0xFF800000

class Cfg:
    D = 6
    MULT = 677
    STAMPS = False
    KFLAGS = "nt"
    VFLAGS = "nt"
    WFLAGS = "nt"
    SPIN_MAX = 200000
    TOUCH = True
    PREBAR = 40
    CHUNK = 230
    TOUCH_WGS = 32
    GSLEEP = 3
    SKIP_FFN = False
    SKIP_COMPUTE = False
    SKIP_WO = False
    D0 = 3
    N0 = 10
    W1_AFTER = True
    MLSLEEP = 2

def srd(a, dst, lo, hi, size):
    a(f"s_mov_b32 s{dst}, s{lo}")
    a(f"s_and_b32 s{dst+1}, s{hi}, 0xffff")
    a(f"s_mov_b32 s{dst+2}, {size}")
    a(f"s_mov_b32 s{dst+3}, 0x20000")

def allreduce(a, op, regs, tmps, rors=(8, 4, 2, 1), cross=True):
    n = len(regs)
    for k in rors:
        a.nop(max(0, 2 - (n - 1)))
        for r in regs:
            a(f"{op}_dpp v{r}, v{r}, v{r} row_ror:{k} row_mask:0xf bank_mask:0xf")
    if cross:
        for sw in ("v_permlane16_swap_b32", "v_permlane32_swap_b32"):
            for r, t in zip(regs, tmps):
                a(f"v_mov_b32 v{t}, v{r}")
            a.nop(2)
            for r, t in zip(regs, tmps):
                a(f"{sw} v{r}, v{t}")
            a.nop(1)
            for r, t in zip(regs, tmps):
                a(f"{op} v{r}, v{r}, v{t}")

class Stamps:
    def __init__(self, a, on):
        self.a = a; self.on = on
    def mark(self, i):
        if self.on:
            self.a(f"s_memrealtime s[{64+2*i}:{65+2*i}]")
    def init(self):
        if self.on:
            for i in range(16):
                self.a(f"s_mov_b64 s[{64+2*i}:{65+2*i}], 0")
    def dump(self):
        if not self.on: return
        a = self.a
        a("s_waitcnt lgkmcnt(0)")
        a("s_lshl_b32 s62, s2, 3"); a("s_add_u32 s62, s62, s3"); a("s_lshl_b32 s62, s62, 7"); a(f"s_add_u32 s62, s62, {WS_DIAG}")
        a("s_mov_b64 exec, 1")
        a("v_mov_b32 v250, 0")
        for i in range(0, 16, 2):
            for k in range(4):
                a(f"v_mov_b32 v{252+k}, s{64+2*i+k}")
            a(f"buffer_store_dwordx4 v[252:255], v250, s[28:31], s62 offen offset:{i*8}")
            a("s_nop 1")
        a("s_waitcnt vmcnt(0)")
        a("s_mov_b64 exec, -1")

def spin_guard(a, cnt_s, fail_label):
    a(f"s_sub_u32 s{cnt_s}, s{cnt_s}, 1")
    a(f"s_cbranch_scc1 {fail_label}")

def lds_flag_wait(a, addr, cfg, name):
    a(f"v_mov_b32 v2, {addr}")
    a(f"s_mov_b32 s43, {cfg.SPIN_MAX}")
    a.label(f"L_{name}")
    a("ds_read_b32 v3, v2"); a("s_waitcnt lgkmcnt(0)"); a("v_readfirstlane_b32 s44, v3")
    a("s_cmp_eq_u32 s44, s24"); a(f"s_cbranch_scc1 L_{name}_ok")
    spin_guard(a, 43, f"L_{name}_ok")
    a("s_sleep 1")
    a(f"s_branch L_{name}")
    a.label(f"L_{name}_ok")

def lds_flag_set(a, addr, t0, t1):
    a(f"v_mov_b32 v{t0}, {addr}"); a(f"v_mov_b32 v{t1}, s24"); a(f"ds_write_b32 v{t0}, v{t1}")

def pv_selectors(a, SEL, mode, t):
    t0, t1, t2, t3 = t
    if mode == "pv":
        a(f"v_bfe_u32 v{t0}, v0, 3, 1"); a(f"v_lshlrev_b32 v{t0}, 1, v{t0}")
    elif mode == "lo":
        a(f"v_mov_b32 v{t0}, 0")
    elif mode == "wo":
        a(f"v_bfe_u32 v{t0}, v0, 4, 1"); a(f"v_lshlrev_b32 v{t0}, 1, v{t0}")
    a(f"v_add_u32 v{t1}, 1, v{t0}"); a(f"v_lshl_or_b32 v{t0}, v{t1}, 8, v{t0}")
    a(f"v_or_b32 v{t1}, 0x0c0c0000, v{t0}")
    a(f"v_lshlrev_b32 v{t2}, 16, v{t0}"); a(f"v_or_b32 v{t2}, 0x0c0c, v{t2}")
    a(f"v_and_b32 v{t3}, 1, v0"); a(f"v_cmp_eq_u32 vcc, 1, v{t3}")
    a("s_nop 1")
    a(f"v_cndmask_b32 v{t0}, v{t1}, v{t2}, vcc")
    a(f"v_bfe_u32 v{t3}, v0, 1, 2")
    if mode == "wo":
        a(f"v_bfe_u32 v{t2}, v0, 3, 1"); a(f"v_lshl_or_b32 v{t3}, v{t2}, 2, v{t3}")
    a(f"v_mov_b32 v{t1}, 0x0c0c0c0c")
    for d in range(4):
        a(f"v_cmp_eq_u32 vcc, {d}, v{t3}")
        a("s_nop 1")
        a(f"v_cndmask_b32 v{SEL+d}, v{t1}, v{t0}, vcc")

def div_uniform(a, q, num, den, r, e):
    a(f"v_mul_f32 v{q}, v{num}, v{r}")
    a(f"v_fma_f32 v{e}, -v{q}, v{den}, v{num}")
    a(f"v_fma_f32 v{q}, v{e}, v{r}, v{q}")

def recip(a, r, den, e):
    a(f"v_rcp_f32 v{r}, v{den}")
    a("s_nop 0")
    a(f"v_fma_f32 v{e}, -v{den}, v{r}, 1.0")
    a(f"v_fma_f32 v{r}, v{e}, v{r}, v{r}")

def layernorm(a, X, F, out, tmp):
    t = tmp
    for i in range(5):
        a(f"v_lshlrev_b32 v{F+2*i}, 16, v{X+i}"); a(f"v_and_b32 v{F+2*i+1}, 0xffff0000, v{X+i}")
    S = t; T = t + 1; N = t + 2; R = t + 3; E = t + 4; M = t + 5; DEN = t + 6; A = t + 7
    a(f"v_add_f32 v{S}, v{F}, v{F+1}")
    for i in range(2, 10): a(f"v_add_f32 v{S}, v{S}, v{F+i}")
    allreduce(a, "v_add_f32", [S], [T])
    a(f"v_mov_b32 v{N}, 0x44100000")
    a(f"v_mov_b32 v{R}, 0x3ae38e39")
    div_uniform(a, M, S, N, R, E)
    a(f"v_mov_b32 v{S}, 0")
    for i in range(8):
        a(f"v_sub_f32 v{T}, v{F+i}, v{M}"); a(f"v_fma_f32 v{S}, v{T}, v{T}, v{S}")
    a("s_mov_b32 exec_hi, 0")
    for i in range(8, 10):
        a(f"v_sub_f32 v{T}, v{F+i}, v{M}"); a(f"v_fma_f32 v{S}, v{T}, v{T}, v{S}")
    a("s_mov_b32 exec_hi, -1")
    allreduce(a, "v_add_f32", [S], [T])
    div_uniform(a, A, S, N, R, E)
    a(f"v_cvt_pk_bf16_f32 v{T}, v{A}, v{M}")
    a(f"v_lshlrev_b32 v{A}, 16, v{T}"); a(f"v_and_b32 v{M}, 0xffff0000, v{T}")
    a(f"v_add_f32 v{A}, 0x3727c5ac, v{A}")
    a(f"v_cvt_pk_bf16_f32 v{T}, v{A}, v{A}"); a(f"v_lshlrev_b32 v{A}, 16, v{T}")
    a(f"v_sqrt_f32 v{A}, v{A}")
    a("s_nop 0")
    a(f"v_cvt_pk_bf16_f32 v{T}, v{A}, v{A}"); a(f"v_lshlrev_b32 v{DEN}, 16, v{T}")
    recip(a, R, DEN, E)
    for i in range(5):
        x0, x1 = F + 2*i, F + 2*i + 1
        a(f"v_sub_f32 v{x0}, v{x0}, v{M}"); a(f"v_sub_f32 v{x1}, v{x1}, v{M}")
        a(f"v_cvt_pk_bf16_f32 v{T}, v{x0}, v{x1}")
        a(f"v_lshlrev_b32 v{x0}, 16, v{T}"); a(f"v_and_b32 v{x1}, 0xffff0000, v{T}")
        a(f"v_mul_f32 v{S}, v{x0}, v{R}"); a(f"v_mul_f32 v{A}, v{x1}, v{R}")
        a(f"v_fma_f32 v{E}, -v{S}, v{DEN}, v{x0}"); a(f"v_fma_f32 v{N}, -v{A}, v{DEN}, v{x1}")
        a(f"v_fma_f32 v{S}, v{E}, v{R}, v{S}"); a(f"v_fma_f32 v{A}, v{N}, v{R}, v{A}")
        a(f"v_cvt_pk_bf16_f32 v{out+i}, v{S}, v{A}")

def fold40(a, regs, tmps):
    for r, t in zip(regs, tmps): a(f"v_mov_b32 v{t}, v{r}")
    a.nop(2)
    for r, t in zip(regs, tmps): a(f"v_permlane32_swap_b32 v{r}, v{t}")
    a.nop(2)
    for r, t in zip(regs, tmps):
        a(f"v_add_f32_dpp v{r}, v{t}, v{r} row_ror:8 row_mask:0xf bank_mask:0xf")

def piece_gemv(a, W, XV, SEL, AX, DQ, nload_after, n=18):
    for k in range(n):
        A = AX + 4 * (k & 1)
        for d in range(4): a(f"v_perm_b32 v{A+d}, v{XV+k}, v{XV+k}, v{SEL+d}")
        a(f"s_waitcnt vmcnt({nload_after(k)})")
        a("s_nop 0")
        a(f"v_mfma_f32_16x16x32_bf16 {vr(DQ,4)}, {vr(A,4)}, {vr(W+4*k,4)}, {'0' if k == 0 else vr(DQ,4)}")

def publish_piece(a, DQ, T, soff):
    a.nop(2)
    a(f"v_mov_b32_dpp v{DQ}, v{DQ+2} row_ror:8 row_mask:0xf bank_mask:0xc")
    a(f"v_mov_b32_dpp v{DQ+1}, v{DQ+3} row_ror:8 row_mask:0xf bank_mask:0xc")
    a(f"v_mov_b32 v{T}, v{DQ}"); a(f"v_mov_b32 v{T+1}, s24"); a(f"v_mov_b32 v{T+2}, v{DQ+1}"); a(f"v_mov_b32 v{T+3}, s24")

def piece_addr(a, v, t):
    a(f"v_and_b32 v{v}, 7, v0"); a(f"v_lshlrev_b32 v{v}, 6, v{v}")
    a(f"v_bfe_u32 v{t}, v0, 4, 1"); a(f"v_lshl_add_u32 v{v}, v{t}, 5, v{v}")
    a(f"v_bfe_u32 v{t}, v0, 3, 1"); a(f"v_lshl_add_u32 v{v}, v{t}, 4, v{v}")

def check_tags(a, tagregs, t0, t1, ok_label, full="-1"):
    regs = list(tagregs)
    a(f"v_min_u32 v{t0}, v{regs[0]}, v{regs[1]}"); a(f"v_max_u32 v{t1}, v{regs[0]}, v{regs[1]}")
    i = 2
    while i + 1 < len(regs):
        a(f"v_min3_u32 v{t0}, v{t0}, v{regs[i]}, v{regs[i+1]}"); a(f"v_max3_u32 v{t1}, v{t1}, v{regs[i]}, v{regs[i+1]}")
        i += 2
    if i < len(regs):
        a(f"v_min_u32 v{t0}, v{t0}, v{regs[i]}"); a(f"v_max_u32 v{t1}, v{t1}, v{regs[i]}")
    a(f"v_cmp_eq_u32 vcc, s24, v{t0}"); a(f"v_cmp_eq_u32 s[44:45], s24, v{t1}")
    a("s_and_b64 vcc, vcc, s[44:45]")
    a(f"s_cmp_eq_u64 vcc, {full}")
    a(f"s_cbranch_scc1 {ok_label}")

def gen(cfg):
    a = Asm()
    st = Stamps(a, cfg.STAMPS)
    D = cfg.D
    a.raw(f"; @launch grid=({NWG},1,1) block=(512,1,1) lds={LDS_TOTAL}")
    a.raw('.amdgcn_target "amdgcn-amd-amdhsa--gfx950"')
    a.raw(".text")
    a.raw(f".globl {NAME}_kernel")
    a.raw(".p2align 8")
    a.raw(f".type {NAME}_kernel,@function")
    a.label(f"{NAME}_kernel")
    a(f"s_cmp_ge_u32 s2, {NWG}")
    a("s_cbranch_scc1 L_end")
    st.init()
    st.mark(0)
    a("s_load_dwordx16 s[4:19], s[0:1], 0")
    a("s_load_dwordx2 s[20:21], s[0:1], 64")
    a("s_load_dwordx2 s[22:23], s[0:1], 80")
    a("v_lshrrev_b32 v1, 6, v0")
    a("v_and_b32 v0, 63, v0")
    a("v_readfirstlane_b32 s3, v1")
    a("s_and_b32 s25, s2, 15")
    a("s_lshr_b32 s26, s2, 4")
    a("s_cmp_ge_u32 s3, 4")
    a("s_cbranch_scc1 L_helper")
    gen_stream(a, cfg, st)
    gen_helpers(a, cfg, st)
    a.label("L_end")
    a("s_endpgm")
    a.label("L_codeend")
    a.raw(".section .rodata,\"a\"")
    a.raw(".p2align 6")
    a.raw(f".amdhsa_kernel {NAME}_kernel")
    a.raw("  .amdhsa_next_free_vgpr 256")
    a.raw("  .amdhsa_next_free_sgpr 102")
    a.raw("  .amdhsa_accum_offset 256")
    a.raw("  .amdhsa_group_segment_fixed_size 0")
    a.raw("  .amdhsa_kernarg_size 88")
    a.raw("  .amdhsa_user_sgpr_count 2")
    a.raw("  .amdhsa_user_sgpr_kernarg_segment_ptr 1")
    a.raw("  .amdhsa_system_sgpr_workgroup_id_x 1")
    a.raw("  .amdhsa_float_denorm_mode_32 3")
    a.raw("  .amdhsa_float_denorm_mode_16_64 3")
    a.raw(".end_amdhsa_kernel")
    return a.text()

def gen_stream(a, cfg, st):
    D = cfg.D
    vK0, vK1, vV = 2, 3, 4
    vLds = 5
    vOadr, vMLadr = 6, 7
    RING = 64
    AQK = 128
    DA, DB, OO = 160, 164, 168
    APV = 172
    SEL = 180
    PK, BC, S0, S1 = 184, 185, 186, 187
    P0, Q0, P1, Q1 = 188, 189, 190, 191
    L0, L1 = 192, 193
    T0, T1, T2, T3, T4, T5 = 194, 195, 196, 197, 198, 199
    STG = 200
    sKoff, sVoff, sM0, sM1 = 40, 41, 42, 43
    sLo, sHi = 44, 46
    sCnt, sStride, sLdsB, sU = 48, 49, 50, 51
    HT = 8192
    stride = (64 * cfg.MULT * HT) % (1 << 24)
    MASK = (1 << 24) - 1

    a(f"v_and_b32 v8, 7, v0")
    a(f"v_lshlrev_b32 v{vK0}, 10, v8")
    a(f"v_bfe_u32 v8, v0, 3, 1")
    a(f"v_lshl_add_u32 v{vK0}, v8, 6, v{vK0}")
    a(f"v_lshrrev_b32 v9, 4, v0")
    a(f"v_lshl_add_u32 v{vK0}, v9, 4, v{vK0}")
    a(f"v_lshlrev_b32 v{vV}, 4, v0")
    a(f"v_add_u32 v{vK1}, 4096, v{vV}")
    a(f"s_lshl_b32 s{sU}, s26, 2"); a(f"s_add_u32 s{sU}, s{sU}, s3")
    a(f"s_mul_i32 s{sKoff}, s{sU}, {(cfg.MULT * HT) % (1 << 32)}")
    a(f"s_and_b32 s{sKoff}, s{sKoff}, {MASK}")
    a(f"s_mov_b32 s{sVoff}, s{sKoff}")
    a(f"s_lshl_b32 s{sLdsB}, s3, 15")
    a(f"s_lshl_b32 s52, s25, 24")
    a("s_waitcnt lgkmcnt(0)")
    a("s_add_u32 s32, s6, s52"); a("s_addc_u32 s33, s7, 0"); a("s_and_b32 s33, s33, 0xffff"); a(f"s_mov_b32 s34, {1<<24}"); a("s_mov_b32 s35, 0x20000")
    a("s_add_u32 s36, s8, s52"); a("s_addc_u32 s37, s9, 0"); a("s_and_b32 s37, s37, 0xffff"); a(f"s_mov_b32 s38, {1<<24}"); a("s_mov_b32 s39, 0x20000")

    def adv_k():
        a(f"s_add_u32 s{sKoff}, s{sKoff}, {stride}"); a(f"s_and_b32 s{sKoff}, s{sKoff}, {MASK}")
    def adv_v():
        a(f"s_add_u32 s{sVoff}, s{sVoff}, {stride}"); a(f"s_and_b32 s{sVoff}, s{sVoff}, {MASK}")
    def load_params(i):
        if i < 16:
            t = (i >> 1) & 3; c = i & 1
            return ("K", vK0, t * 256 + c * 128)
        n = i - 16
        rr = n & 7
        return ("V", vV if rr < 4 else vK1, (rr & 3) * 1024)
    def issue(I, lds=False, last_round_guard=False):
        i = I % 32
        kind, vo, io = load_params(i)
        if i == 0 and I > 0:
            adv_k()
            if last_round_guard:
                a(f"s_cmp_eq_u32 s{sCnt}, 1"); a("s_cselect_b32 s34, 0, s34")
        if i == 8: adv_k()
        if i == 16 and I > 16: adv_v()
        if i == 24: adv_v()
        srdr = "s[32:35]" if kind == "K" else "s[36:39]"
        so = sKoff if kind == "K" else sVoff
        fl = cfg.KFLAGS if kind == "K" else cfg.VFLAGS
        if lds:
            a(f"s_add_u32 m0, s{sLdsB}, {1024 * I - io}")
            a("s_nop 0")
            a(f"buffer_load_dwordx4 v{vo}, {srdr}, s{so} offen offset:{io} {fl} lds")
        else:
            r = RING + (I % 16) * 4
            a(f"buffer_load_dwordx4 {vr(r,4)}, v{vo}, {srdr}, s{so} offen offset:{io} {fl}")

    PRE = cfg.PREBAR
    assert 32 + D <= PRE <= 48 or PRE >= 32
    D0 = min(cfg.D0, D)
    first_setup = D0 - 1
    for I in range(PRE):
        dd = D0 if I < cfg.N0 else D
        if I >= dd:
            a(f"s_waitcnt vmcnt({dd-1})")
            if I == D0: st.mark(1)
        issue(I, lds=(I < 32))
        if I == first_setup:
            a(f"s_load_dword s24, s[22:23], {WS_E}")
            srd(a, 28, 22, 23, WS_SIZE)
            a(f"v_lshlrev_b32 v{vLds}, 4, v0"); a(f"v_add_u32 v{vLds}, s{sLdsB}, v{vLds}")
            a(f"s_mov_b32 s{sLo}, 0x00ff00ff"); a(f"s_mov_b32 s{sLo+1}, 0x00ff00ff")
            a(f"s_mov_b32 s{sHi}, 0"); a(f"s_mov_b32 s{sHi+1}, -1")
            pv_selectors(a, SEL, mode="pv", t=(8, 9, 10, 11))
            a("v_lshrrev_b32 v8, 5, v0"); a("v_lshlrev_b32 v8, 3, v8")
            a("v_bfe_u32 v9, v0, 1, 3"); a("v_add_u32 v8, v8, v9")
            a("v_lshlrev_b32 v8, 13, v8")
            a("v_and_b32 v9, 1, v0"); a("v_lshlrev_b32 v9, 5, v9")
            a("v_bfe_u32 v10, v0, 4, 1"); a("v_lshl_add_u32 v9, v10, 4, v9")
            a("v_add_u32 v8, v8, v9")
            a(f"s_lshl_b32 s53, s25, 17"); a(f"s_lshl_b32 s54, s{sU}, 7"); a("s_add_u32 s53, s53, s54"); a(f"s_add_u32 s53, s53, {WS_OP}")
            a(f"v_add_u32 v{vOadr}, s53, v8")
            a("v_lshrrev_b32 v8, 5, v0"); a("v_lshlrev_b32 v8, 10, v8")
            a(f"s_lshl_b32 s53, s25, 11"); a(f"s_lshl_b32 s54, s{sU}, 4"); a("s_add_u32 s53, s53, s54"); a(f"s_add_u32 s53, s53, {WS_ML}")
            a(f"v_add_u32 v{vMLadr}, s53, v8")
            for r in range(4): a(f"v_mov_b32 v{OO+r}, 0")
            a(f"v_mov_b32 v{L0}, 0"); a(f"v_mov_b32 v{L1}, 0")
            a(f"s_mov_b32 s{sM0}, {NEG_INF:#x}"); a(f"s_mov_b32 s{sM1}, {NEG_INF:#x}")
            a("v_bfe_u32 v8, v0, 1, 1"); a("v_lshlrev_b32 v8, 8, v8")
            a("v_and_b32 v9, 1, v0"); a("v_lshl_add_u32 v8, v9, 6, v8")
            a("v_lshrrev_b32 v9, 4, v0"); a("v_lshl_add_u32 v8, v9, 4, v8")
            a(f"v_add_u32 v20, {LDS_Q}, v8")
    st.mark(2)
    a("s_waitcnt lgkmcnt(0)")
    a("s_add_u32 s24, s24, 1")
    a("s_barrier")
    st.mark(3)

    issued = PRE
    arrived = PRE - D
    def need(idx):
        nonlocal arrived
        if idx >= arrived:
            a(f"s_waitcnt vmcnt({issued - 1 - idx})")
            arrived = idx + 1
    def step_issue():
        nonlocal issued, arrived
        tgt = issued - D
        if tgt >= arrived:
            a(f"s_waitcnt vmcnt({D-1})")
            arrived = tgt + 1
        issue(issued)
        issued += 1

    def mfma_k(i, breg, first):
        t = (i >> 1) & 3; c = i & 1
        dst = DA if i < 8 else DB
        A = AQK + (t * 2 + c) * 4
        cin = "0" if first else vr(dst, 4)
        a(f"v_mfma_f32_16x16x32_bf16 {vr(dst,4)}, {vr(A,4)}, {vr(breg,4)}, {cin}")
    def score_a(s0, s1):
        a(f"v_cndmask_b32 v{P0}, v{DB+1}, v{DA+0}, s[{sLo}:{sLo+1}]")
        a(f"v_cndmask_b32 v{Q0}, v{DA+1}, v{DB+0}, s[{sLo}:{sLo+1}]")
        a(f"v_cndmask_b32 v{Q1}, v{DA+3}, v{DB+2}, s[{sLo}:{sLo+1}]")
        a(f"v_cndmask_b32 v{P1}, v{DB+3}, v{DA+2}, s[{sLo}:{sLo+1}]")
        a(f"v_add_f32_dpp v{s0}, v{Q0}, v{P0} row_ror:8 row_mask:0xf bank_mask:0xf")
        a("s_nop 0")
        a(f"v_add_f32_dpp v{s1}, v{Q1}, v{P1} row_ror:8 row_mask:0xf bank_mask:0xf")
        a(f"v_cvt_pk_bf16_f32 v{T0}, v{s0}, v{s1}")
        a(f"v_lshlrev_b32 v{s0}, 16, v{T0}")
        a(f"v_and_b32 v{s1}, 0xffff0000, v{T0}")
        a(f"v_mul_f32 v{s0}, {SCALE:#x}, v{s0}")
        a(f"v_mul_f32 v{s1}, {SCALE:#x}, v{s1}")
        a(f"v_cvt_pk_bf16_f32 v{T0}, v{s0}, v{s1}")
        a(f"v_lshlrev_b32 v{s0}, 16, v{T0}")
        a(f"v_and_b32 v{s1}, 0xffff0000, v{T0}")
    def max_update(x0, x1):
        a(f"v_mov_b32 v{T0}, v{x0}"); a(f"v_mov_b32 v{T1}, v{x1}")
        allreduce(a, "v_max_f32", [T0, T1], [T2, T3])
        a(f"v_max_f32 v{T0}, s{sM0}, v{T0}"); a(f"v_max_f32 v{T1}, s{sM1}, v{T1}")
        a(f"v_sub_f32 v{T2}, s{sM0}, v{T0}"); a(f"v_sub_f32 v{T3}, s{sM1}, v{T1}")
        a(f"v_readfirstlane_b32 s{sM0}, v{T0}"); a(f"v_readfirstlane_b32 s{sM1}, v{T1}")
        a(f"v_mul_f32 v{T2}, {LOG2E:#x}, v{T2}"); a(f"v_mul_f32 v{T3}, {LOG2E:#x}, v{T3}")
        a(f"v_exp_f32 v{T2}, v{T2}"); a(f"v_exp_f32 v{T3}, v{T3}")
        a("s_nop 0")
        a(f"v_mul_f32 v{L0}, v{L0}, v{T2}"); a(f"v_mul_f32 v{L1}, v{L1}, v{T3}")
        a(f"v_cndmask_b32 v{T4}, v{T2}, v{T3}, s[{sHi}:{sHi+1}]")
        for r in range(4): a(f"v_mul_f32 v{OO+r}, v{OO+r}, v{T4}")
    def exp_b(s0, s1, pk):
        a(f"v_subrev_f32 v{s0}, s{sM0}, v{s0}"); a(f"v_subrev_f32 v{s1}, s{sM1}, v{s1}")
        a(f"v_mul_f32 v{s0}, {LOG2E:#x}, v{s0}"); a(f"v_mul_f32 v{s1}, {LOG2E:#x}, v{s1}")
        a(f"v_exp_f32 v{s0}, v{s0}"); a(f"v_exp_f32 v{s1}, v{s1}")
        a("s_nop 0")
        a(f"v_add_f32 v{L0}, v{L0}, v{s0}"); a(f"v_add_f32 v{L1}, v{L1}, v{s1}")
        a(f"v_cvt_pk_bf16_f32 v{pk}, v{s0}, v{s1}")
    def prep_v(n, pk, aset=0):
        A = APV + 4 * aset
        a(f"v_mov_b32_dpp v{BC}, v{pk} row_newbcast:{n} row_mask:0xf bank_mask:0xf")
        for d in range(4):
            a(f"v_perm_b32 v{A+d}, v{BC}, v{BC}, v{SEL+d}")
    def mfma_v(breg, aset=0):
        A = APV + 4 * aset
        a(f"v_mfma_f32_16x16x32_bf16 {vr(OO,4)}, {vr(A,4)}, {vr(breg,4)}, {vr(OO,4)}")

    work = []
    def ldsread(slot8, I):
        a(f"ds_read_b128 {vr(STG + 4*slot8, 4)}, v{vLds} offset:{1024 * I}")
    def w_first():
        a(f"ds_read_b128 v[12:15], v20"); a(f"ds_read_b128 v[16:19], v20 offset:128")
        for k in range(8): ldsread(k, k)
    work.append((60, w_first))
    def w_aqk(t):
        def f():
            m = 0x000F000F << (4 * t)
            a(f"s_mov_b32 s54, {m:#x}"); a(f"s_mov_b32 s55, {m:#x}")
            if t == 0: a("s_waitcnt lgkmcnt(8)")
            for c in range(2):
                for d in range(4):
                    a(f"v_cndmask_b32 v{AQK + (t*2+c)*4 + d}, 0, v{12 + 4*c + d}, s[54:55]")
        return f
    for t in range(4): work.append((45 if t else 120, w_aqk(t)))
    lds_out = []
    def w_k0(k):
        def f():
            a("s_waitcnt lgkmcnt(7)")
            mfma_k(k, STG + 4*(k % 8), k in (0, 8))
            ldsread(k % 8, k + 8)
        return f
    for k in range(16): work.append((28, w_k0(k)))
    def w_sm():
        a.nop(8); score_a(S0, S1)
    work.append((110, w_sm))
    work.append((230, lambda: max_update(S0, S1)))
    def w_eb():
        a.nop(1); exp_b(S0, S1, PK); a.nop(2)
    work.append((70, w_eb))
    def w_v0(n):
        def f():
            I = 16 + n
            prep_v(n, PK, n & 1)
            rem = min(7, 31 - I)
            a(f"s_waitcnt lgkmcnt({rem})")
            a("s_nop 0")
            mfma_v(STG + 4*(I % 8), n & 1)
            if I + 8 < 32: ldsread(I % 8, I + 8)
        return f
    for n in range(16): work.append((50, w_v0(n)))
    step_issue()
    acc = 0
    for cost, fn in work:
        fn(); acc += cost
        if acc >= cfg.CHUNK and issued < 48:
            step_issue(); acc = 0
    while issued < 48: step_issue()
    for i in range(16 - D):
        need(32 + i)
        mfma_k(i, RING + (i % 16) * 4, i in (0, 8))
    st.mark(4)
    a(f"s_mov_b32 s{sCnt}, 15")
    a("s_branch L_loop_entry")
    a.raw(".p2align 6")
    a.label("L_loop")
    for i in range(32):
        if i == 16 - D: a.label("L_loop_entry")
        slot = RING + (i % 16) * 4
        if i >= 16 and not cfg.SKIP_COMPUTE:
            if i == 16: a("s_nop 1")
            prep_v(i - 16, PK)
        a(f"s_waitcnt vmcnt({D-1})")
        issue(64 + i + D if (i + D) < 32 else 96 + (i + D - 32), last_round_guard=True)
        if cfg.SKIP_COMPUTE:
            if i == 15 and cfg.TOUCH:
                a(f"v_mov_b32 v{T0}, s{sCnt}"); a(f"v_mov_b32 v{T1}, {LDS_PROG}")
                a(f"ds_write_b32 v{T1}, v{T0}")
            continue
        if i < 16:
            mfma_k(i, slot, i in (0, 8))
        else:
            mfma_v(slot)
        if i == 15:
            a.nop(8)
            score_a(S0, S1)
            a(f"v_cmp_lt_f32 vcc, s{sM0}, v{S0}")
            a(f"v_cmp_lt_f32 s[54:55], s{sM1}, v{S1}")
            a("s_or_b64 vcc, vcc, s[54:55]")
            a("s_cbranch_scc1 L_rare")
            a.label("L_back")
            exp_b(S0, S1, PK)
            if cfg.TOUCH:
                a(f"v_mov_b32 v{T0}, s{sCnt}"); a(f"v_mov_b32 v{T1}, {LDS_PROG}")
                a(f"ds_write_b32 v{T1}, v{T0}")
    a(f"s_sub_u32 s{sCnt}, s{sCnt}, 1")
    a(f"s_cmp_lg_u32 s{sCnt}, 0")
    a("s_cbranch_scc1 L_loop")
    st.mark(5)
    a.nop(8)
    a(f"v_mov_b32 v{STG+0}, v{OO+0}"); a(f"v_mov_b32 v{STG+1}, s24"); a(f"v_mov_b32 v{STG+2}, v{OO+1}"); a(f"v_mov_b32 v{STG+3}, s24")
    a(f"v_mov_b32 v{STG+4}, v{OO+2}"); a(f"v_mov_b32 v{STG+5}, s24"); a(f"v_mov_b32 v{STG+6}, v{OO+3}"); a(f"v_mov_b32 v{STG+7}, s24")
    a(f"buffer_store_dwordx4 {vr(STG,4)}, v{vOadr}, s[28:31], 0 offen sc0 sc1")
    a(f"buffer_store_dwordx4 {vr(STG+4,4)}, v{vOadr}, s[28:31], 0 offen offset:64 sc0 sc1")
    allreduce(a, "v_add_f32", [L0, L1], [T2, T3])
    a(f"v_mov_b32 v{T0}, s{sM0}"); a(f"v_mov_b32 v{T1}, s{sM1}")
    a(f"v_cndmask_b32 v{STG+8}, v{T0}, v{T1}, s[{sHi}:{sHi+1}]")
    a(f"v_mov_b32 v{STG+9}, s24")
    a(f"v_cndmask_b32 v{STG+10}, v{L0}, v{L1}, s[{sHi}:{sHi+1}]")
    a(f"v_mov_b32 v{STG+11}, s24")
    a("s_mov_b32 exec_lo, 1"); a("s_mov_b32 exec_hi, 1")
    a(f"buffer_store_dwordx4 {vr(STG+8,4)}, v{vMLadr}, s[28:31], 0 offen sc0 sc1")
    a("s_mov_b64 exec, -1")
    st.mark(6)
    a("s_barrier")
    st.dump()
    a("s_endpgm")
    if not cfg.SKIP_COMPUTE:
        a.label("L_rare")
        max_update(S0, S1)
        a("s_nop 1")
        a("s_branch L_back")

def gen_helpers(a, cfg, st):
    a.raw(".p2align 6")
    a.label("L_helper")
    a("s_waitcnt lgkmcnt(0)")
    a(f"s_load_dword s24, s[22:23], {WS_E}")
    srd(a, 28, 22, 23, WS_SIZE)
    a("s_cmp_eq_u32 s3, 4"); a("s_cbranch_scc1 L_w4")
    a("s_cmp_eq_u32 s3, 5"); a("s_cbranch_scc1 L_w5")
    if cfg.TOUCH:
        a("s_cmp_eq_u32 s3, 7")
        a("s_cbranch_scc0 L_not7")
        a(f"s_cmp_ge_u32 s2, {cfg.TOUCH_WGS}")
        a("s_cbranch_scc1 L_not6")
        a("s_getpc_b64 s[32:33]")
        a.label("L_pc7")
        a(f"s_sub_u32 s32, s32, L_pc7-{NAME}_kernel"); a("s_subb_u32 s33, s33, 0")
        a("s_and_b32 s33, s33, 0xffff"); a(f"s_mov_b32 s34, L_codeend-{NAME}_kernel"); a("s_mov_b32 s35, 0x20000")
        a("v_lshlrev_b32 v2, 4, v0")
        a("s_mov_b32 s36, 0")
        a.label("L_t7")
        a("buffer_load_dwordx4 v[4:7], v2, s[32:35], s36 offen")
        a("s_add_u32 s36, s36, 1024"); a("s_cmp_lt_u32 s36, s34"); a("s_cbranch_scc1 L_t7")
        a("s_branch L_not6")
        a.label("L_not7")
        a(f"v_mov_b32 v2, {LDS_PROG}"); a("v_mov_b32 v3, 99"); a("ds_write_b32 v2, v3")
        a.label("L_not6")
    a("s_waitcnt lgkmcnt(0)")
    a("s_add_u32 s24, s24, 1")
    a("s_branch L_gatherwait")

    a.label("L_w4")
    srd(a, 32, 4, 5, 1152)
    srd(a, 36, 10, 11, 576 * 8192)
    a("v_lshlrev_b32 v2, 2, v0")
    for i in range(5):
        a(f"buffer_load_dword v{8+i}, v2, s[32:35], 0 offen offset:{256*i}")
    a("s_lshr_b32 s40, s2, 3"); a("s_bfe_u32 s41, s2, 0x10002"); a("s_lshl_b32 s41, s41, 5"); a("s_add_u32 s40, s40, s41")
    a("s_and_b32 s41, s2, 3")
    a(f"s_mul_i32 s42, s41, {144*8192}"); a("s_lshl_b32 s43, s40, 7"); a("s_add_u32 s42, s42, s43")
    a("v_lshrrev_b32 v3, 3, v0"); a("v_lshlrev_b32 v3, 13, v3"); a("v_and_b32 v4, 7, v0"); a("v_lshl_add_u32 v3, v4, 4, v3")
    WQ = 64
    for n in range(18):
        a(f"buffer_load_dwordx4 {vr(WQ+4*n,4)}, v3, s[36:39], s42 offen {cfg.WFLAGS}")
        if n < 17: a("s_add_u32 s42, s42, 65536")
    SELX = 16
    pv_selectors(a, SELX, mode="lo", t=(20, 21, 22, 23))
    piece_addr(a, 5, 6)
    a("s_waitcnt vmcnt(18)")
    st.mark(1)
    layernorm(a, X=8, F=24, out=8, tmp=36)
    a(f"v_lshlrev_b32 v2, 2, v0"); a(f"v_add_u32 v2, {LDS_XN}, v2")
    for i in range(5): a(f"ds_write_b32 v2, v{8+i} offset:{256*i}")
    a("s_mul_i32 s42, s41, 288"); a(f"s_add_u32 s42, s42, {LDS_XN}")
    a("v_lshrrev_b32 v2, 3, v0"); a("v_lshlrev_b32 v2, 1, v2"); a("v_add_u32 v2, s42, v2")
    a("s_waitcnt lgkmcnt(0)")
    a("s_add_u32 s24, s24, 1")
    XV = 24
    for n in range(18): a(f"ds_read_u16 v{XV+n}, v2 offset:{16*n}")
    lds_flag_set(a, LDS_F0, 6, 7)
    st.mark(2)
    AX = 44; DQ = 52
    a("s_waitcnt lgkmcnt(0)")
    piece_gemv(a, WQ, XV, SELX, AX, DQ, lambda k: 17 - k)
    a.nop(8)
    fold40(a, [DQ+r for r in range(4)], [56, 57, 58, 59])
    a("s_lshl_b32 s42, s40, 2"); a("s_add_u32 s42, s42, s41"); a("s_lshl_b32 s42, s42, 9"); a(f"s_add_u32 s42, s42, {WS_QP}")
    publish_piece(a, DQ, 60, 42)
    a("s_mov_b32 exec_hi, 0")
    a("buffer_store_dwordx4 v[60:63], v5, s[28:31], s42 offen sc0 sc1")
    a("s_mov_b32 exec_hi, -1")
    lds_flag_set(a, LDS_F1, 6, 7)
    st.mark(3)
    a("s_branch L_gather")

    a.label("L_w5")
    if cfg.W1_AFTER:
        a("s_waitcnt lgkmcnt(0)")
        a("s_add_u32 s24, s24, 1")
        a("s_branch L_gatherwait")
    a.label("L_w5b")
    srd(a, 32, 16, 17, 576 * 9216)
    a("v_lshrrev_b32 v3, 3, v0"); a("v_mul_u32_u24 v3, 9216, v3"); a("v_and_b32 v4, 7, v0"); a("v_lshl_add_u32 v3, v4, 4, v3")
    a("s_lshr_b32 s40, s2, 2"); a("s_and_b32 s41, s2, 3")
    a(f"s_mul_i32 s42, s41, {144*9216}"); a("s_lshl_b32 s43, s40, 7"); a("s_add_u32 s42, s42, s43")
    W1 = 64
    for n in range(18):
        a(f"buffer_load_dwordx4 {vr(W1+4*n,4)}, v3, s[32:35], s42 offen {cfg.WFLAGS}")
        if n < 17: a(f"s_add_u32 s42, s42, {8*9216}")
    a("s_cmp_lt_u32 s2, 32"); a("s_cselect_b32 s34, s34, 0")
    a(f"s_mul_i32 s42, s41, {144*9216}"); a("s_add_u32 s43, s40, 64"); a("s_lshl_b32 s43, s43, 7"); a("s_add_u32 s42, s42, s43")
    for n in range(18):
        a(f"buffer_load_dwordx4 {vr(W1+72+4*n,4)}, v3, s[32:35], s42 offen {cfg.WFLAGS}")
        if n < 17: a(f"s_add_u32 s42, s42, {8*9216}")
    pv_selectors(a, SELX, mode="lo", t=(20, 21, 22, 23))
    piece_addr(a, 5, 6)
    if not cfg.W1_AFTER:
        a("s_waitcnt lgkmcnt(0)")
        a("s_add_u32 s24, s24, 1")
        lds_flag_wait(a, LDS_F0, cfg, "w5x")
    a("s_mul_i32 s42, s41, 288"); a(f"s_add_u32 s42, s42, {LDS_XN}")
    a("v_lshrrev_b32 v2, 3, v0"); a("v_lshlrev_b32 v2, 1, v2"); a("v_add_u32 v2, s42, v2")
    for n in range(18): a(f"ds_read_u16 v{XV+n}, v2 offset:{16*n}")
    a("s_waitcnt lgkmcnt(0)")
    piece_gemv(a, W1, XV, SELX, AX, DQ, lambda k: 35 - k)
    a.nop(8)
    fold40(a, [DQ+r for r in range(4)], [56, 57, 58, 59])
    a("s_lshl_b32 s42, s2, 9"); a(f"s_add_u32 s42, s42, {WS_HP}")
    publish_piece(a, DQ, 60, 42)
    a("s_mov_b32 exec_hi, 0")
    a("buffer_store_dwordx4 v[60:63], v5, s[28:31], s42 offen sc0 sc1")
    a("s_mov_b32 exec_hi, -1")
    a("s_cmp_ge_u32 s2, 32"); a("s_cbranch_scc1 L_w5_one")
    piece_gemv(a, W1 + 72, XV, SELX, AX, DQ, lambda k: 0)
    a.nop(8)
    fold40(a, [DQ+r for r in range(4)], [56, 57, 58, 59])
    a(f"s_add_u32 s42, s42, {256*512}")
    publish_piece(a, DQ, 60, 42)
    a("s_mov_b32 exec_hi, 0")
    a("buffer_store_dwordx4 v[60:63], v5, s[28:31], s42 offen sc0 sc1")
    a("s_mov_b32 exec_hi, -1")
    a.label("L_w5_one")
    st.mark(1)
    if cfg.W1_AFTER:
        a("s_branch L_ffn2")

    a.label("L_gatherwait")
    lds_flag_wait(a, LDS_F1, cfg, "gw")
    a.label("L_gather")
    a("s_lshl_b32 s42, s25, 2"); a("s_add_u32 s42, s42, s3"); a("s_sub_u32 s42, s42, 4"); a("s_lshl_b32 s42, s42, 11"); a(f"s_add_u32 s42, s42, {WS_QP}")
    a("v_lshlrev_b32 v2, 3, v0")
    a(f"s_mov_b32 s43, {cfg.SPIN_MAX}")
    a.label("L_gpoll")
    for b in range(4):
        a(f"buffer_load_dwordx2 v[{8+2*b}:{9+2*b}], v2, s[28:31], s42 offen offset:{512*b} sc1")
    a("s_waitcnt vmcnt(0)")
    a("v_cmp_eq_u32 vcc, s24, v9"); a("v_cmp_eq_u32 s[44:45], s24, v11"); a("v_cmp_eq_u32 s[46:47], s24, v13"); a("v_cmp_eq_u32 s[48:49], s24, v15")
    a("s_and_b64 vcc, vcc, s[44:45]"); a("s_and_b64 s[46:47], s[46:47], s[48:49]"); a("s_and_b64 vcc, vcc, s[46:47]")
    a("s_cmp_eq_u64 vcc, -1")
    a("s_cbranch_scc1 L_gdone")
    spin_guard(a, 43, "L_gdone")
    a(f"s_sleep {cfg.GSLEEP}")
    a("s_branch L_gpoll")
    a.label("L_gdone")
    a("v_add_f32 v8, v8, v10"); a("v_add_f32 v8, v8, v12"); a("v_add_f32 v8, v8, v14")
    a("v_cvt_pk_bf16_f32 v8, v8, v8")
    a("s_sub_u32 s42, s3, 4"); a("s_lshl_b32 s42, s42, 7"); a(f"s_add_u32 s42, s42, {LDS_Q}")
    a("v_lshlrev_b32 v2, 1, v0"); a("v_add_u32 v2, s42, v2")
    a("ds_write_b16 v2, v8")
    a("s_waitcnt lgkmcnt(0)")
    st.mark(4)
    a("s_barrier")
    a("s_cmp_eq_u32 s3, 4"); a("s_cbranch_scc1 L_w4b")
    if not cfg.SKIP_FFN:
        a("s_cmp_eq_u32 s3, 5"); a(f"s_cbranch_scc1 {'L_w5b' if cfg.W1_AFTER else 'L_ffn2'}")
    if cfg.TOUCH:
        a("s_cmp_eq_u32 s3, 6"); a("s_cbranch_scc1 L_w6")
    st.dump()
    a("s_endpgm")

    if cfg.TOUCH:
        a.label("L_w6")
        a(f"s_cmp_ge_u32 s2, {cfg.TOUCH_WGS}"); a("s_cbranch_scc1 L_w6end")
        a(f"v_mov_b32 v2, {LDS_PROG}")
        a(f"s_mov_b32 s43, {cfg.SPIN_MAX}")
        a.label("L_w6poll")
        a("ds_read_b32 v3, v2"); a("s_waitcnt lgkmcnt(0)"); a("v_readfirstlane_b32 s44, v3")
        a("s_cmp_le_u32 s44, 2"); a("s_cbranch_scc1 L_w6go")
        spin_guard(a, 43, "L_w6go")
        a("s_sleep 16")
        a("s_branch L_w6poll")
        a.label("L_w6go")
        a("s_getpc_b64 s[32:33]")
        a.label("L_pc6")
        a(f"s_add_u32 s32, s32, L_tail-L_pc6"); a("s_addc_u32 s33, s33, 0")
        a("s_and_b32 s33, s33, 0xffff"); a(f"s_mov_b32 s34, L_codeend-L_tail"); a("s_mov_b32 s35, 0x20000")
        a("v_lshlrev_b32 v2, 4, v0")
        a("s_mov_b32 s36, 0")
        a.label("L_t6")
        a("buffer_load_dwordx4 v[4:7], v2, s[32:35], s36 offen")
        a("s_add_u32 s36, s36, 1024"); a("s_cmp_lt_u32 s36, s34"); a("s_cbranch_scc1 L_t6")
        a.label("L_w6end")
        a("s_endpgm")

    a.label("L_ffn2")
    gen_ffn2(a, cfg, st)
    st.dump()
    a("s_endpgm")
    a.label("L_w4b")
    gen_w4b(a, cfg, st)

def gen_ffn2(a, cfg, st):
    st.mark(5)
    srd(a, 36, 18, 19, 4608 * 1152)
    SEL = 16
    piece_addr(a, 5, 6)
    a("v_lshrrev_b32 v3, 3, v0"); a("v_mul_u32_u24 v3, 1152, v3"); a("v_and_b32 v4, 7, v0"); a("v_lshl_add_u32 v3, v4, 4, v3")
    a("v_cmp_gt_u32 vcc, 16, v0"); a("v_bfrev_b32 v6, 1"); a("s_nop 0"); a("v_cndmask_b32 v4, v6, v3, vcc")
    a(f"s_mul_i32 s40, s2, {18*1152}")
    W2 = 64
    for rb in range(3):
        for cb in range(9):
            vo = 3 if rb < 2 else 4
            a(f"buffer_load_dwordx4 {vr(W2+4*(rb*9+cb),4)}, v{vo}, s[36:39], s40 offen offset:{128*cb} {cfg.WFLAGS}")
        a(f"s_add_u32 s40, s40, {8*1152}")
    a("s_mul_i32 s40, s2, 18"); a("v_add_u32 v6, s40, v0")
    a("v_lshrrev_b32 v7, 6, v6"); a("v_lshlrev_b32 v7, 11, v7"); a("v_and_b32 v6, 63, v6"); a("v_lshl_add_u32 v6, v6, 3, v7")
    a(f"v_add_u32 v6, {WS_HP}, v6")
    a(f"s_mov_b32 s43, {cfg.SPIN_MAX}")
    a("s_mov_b32 exec_lo, 0x3ffff"); a("s_mov_b32 exec_hi, 0")
    a.label("L_hpoll")
    for b in range(4):
        a(f"buffer_load_dwordx2 v[{8+2*b}:{9+2*b}], v6, s[28:31], 0 offen offset:{512*b} sc1")
    a("s_waitcnt vmcnt(0)")
    a("v_cmp_eq_u32 vcc, s24, v9"); a("v_cmp_eq_u32 s[44:45], s24, v11"); a("v_cmp_eq_u32 s[46:47], s24, v13"); a("v_cmp_eq_u32 s[48:49], s24, v15")
    a("s_and_b64 vcc, vcc, s[44:45]"); a("s_and_b64 s[46:47], s[46:47], s[48:49]"); a("s_and_b64 vcc, vcc, s[46:47]")
    a("s_cmp_eq_u64 vcc, 0x3ffff")
    a("s_cbranch_scc1 L_hdone")
    spin_guard(a, 43, "L_hdone")
    a("s_sleep 8")
    a("s_branch L_hpoll")
    a.label("L_hdone")
    a("s_mov_b64 exec, -1")
    a("v_add_f32 v8, v8, v10"); a("v_add_f32 v8, v8, v12"); a("v_add_f32 v8, v8, v14")
    a("v_cvt_pk_bf16_f32 v8, v8, v8"); a("v_lshlrev_b32 v8, 16, v8")
    a("v_mul_f32 v9, 0xbfb8aa3b, v8"); a("v_exp_f32 v9, v9"); a("s_nop 0"); a("v_add_f32 v9, 1.0, v9"); a("v_min_f32 v9, 0x7e967699, v9")
    recip(a, 10, 9, 11)
    div_uniform(a, 12, 8, 9, 10, 11)
    a("v_cvt_pk_bf16_f32 v12, v12, v12")
    a("v_cmp_gt_u32 vcc, 18, v0"); a("s_nop 1"); a("v_cndmask_b32 v12, 0, v12, vcc")
    a("v_lshlrev_b32 v2, 1, v0"); a(f"v_add_u32 v2, {LDS_H}, v2")
    a("s_mov_b32 exec_lo, 0x00ffffff"); a("s_mov_b32 exec_hi, 0")
    a("ds_write_b16 v2, v12")
    a("s_mov_b64 exec, -1")
    a("s_waitcnt lgkmcnt(0)")
    a("v_lshrrev_b32 v2, 3, v0"); a("v_lshlrev_b32 v2, 1, v2"); a(f"v_add_u32 v2, {LDS_H}, v2")
    XV = 24; AX = 28; ACC = 176
    for rb in range(3): a(f"ds_read_u16 v{XV+rb}, v2 offset:{16*rb}")
    a("s_waitcnt lgkmcnt(0)")
    for rb in range(3):
        for d in range(4): a(f"v_perm_b32 v{AX+4*rb+d}, v{XV+rb}, v{XV+rb}, v{SEL+d}")
    a.nop(2)
    for rb in range(3):
        for cb in range(9):
            a(f"v_mfma_f32_16x16x32_bf16 {vr(ACC+4*cb,4)}, {vr(AX+4*rb,4)}, {vr(W2+4*(rb*9+cb),4)}, {'0' if rb == 0 else vr(ACC+4*cb,4)}")
    a.nop(8)
    a(f"s_mul_i32 s40, s2, 4608"); a(f"s_add_u32 s40, s40, {WS_BP}")
    for cb in range(9):
        R = [ACC+4*cb+r for r in range(4)]
        fold40(a, R, [48, 49, 50, 51])
        T = 52 + 4 * (cb & 1)
        publish_piece(a, ACC + 4*cb, T, 40)
        a("s_mov_b32 exec_hi, 0")
        a(f"buffer_store_dwordx4 {vr(T,4)}, v5, s[28:31], s40 offen sc0 sc1")
        a("s_mov_b32 exec_hi, -1")
        a("s_add_u32 s40, s40, 512")
    st.mark(6)

def final_poll(a, cfg, base_off, PA, name, sleep):
    a(f"s_mov_b32 s43, {cfg.SPIN_MAX}")
    a.label(f"L_{name}poll")
    a(f"s_mov_b32 s51, {base_off}")
    for i in range(16):
        a(f"buffer_load_dwordx4 {vr(PA+4*i,4)}, v25, s[28:31], s51 offen sc1")
        if i < 15: a(f"s_add_u32 s51, s51, {16*4608}")
    a("s_waitcnt vmcnt(0)")
    check_tags(a, [PA+4*i+k for i in range(16) for k in (1, 3)], 27, 26, f"L_{name}done")
    spin_guard(a, 43, f"L_{name}done")
    if sleep: a(f"s_sleep {sleep}")
    a(f"s_branch L_{name}poll")
    a.label(f"L_{name}done")
    a(f"v_add_f32 v44, v{PA}, v{PA+4}"); a(f"v_add_f32 v45, v{PA+2}, v{PA+6}")
    for i in range(2, 16):
        a(f"v_add_f32 v44, v44, v{PA+4*i}"); a(f"v_add_f32 v45, v45, v{PA+4*i+2}")
    allreduce(a, "v_add_f32", [44, 45], [27, 26], rors=(4, 8))

def gen_w4b(a, cfg, st):
    srd(a, 32, 12, 13, 4096 * 1152)
    a("s_lshl_b32 s40, s25, 8"); a("s_lshl_b32 s41, s26, 4"); a("s_add_u32 s40, s40, s41"); a("s_mul_i32 s40, s40, 1152")
    a("v_lshrrev_b32 v3, 4, v0"); a("v_mul_u32_u24 v3, 1152, v3"); a("v_and_b32 v4, 15, v0"); a("v_lshl_add_u32 v3, v4, 4, v3")
    a("v_cmp_gt_u32 vcc, 8, v4"); a("v_bfrev_b32 v5, 1"); a("s_nop 0"); a("v_cndmask_b32 v4, v5, v3, vcc")
    WO = 64
    if cfg.SKIP_WO: a("s_mov_b32 s34, 0")
    for rb in range(4):
        for cb in range(5):
            vo = 3 if cb < 4 else 4
            a(f"buffer_load_dwordx4 {vr(WO+4*(rb*5+cb),4)}, v{vo}, s[32:35], s40 offen offset:{256*cb} {cfg.WFLAGS}")
        a(f"s_add_u32 s40, s40, {4*1152}")
    SELW = 16
    pv_selectors(a, SELW, mode="wo", t=(20, 21, 22, 23))
    vML, vO, vAP, vFin = 6, 7, 8, 9
    a("s_lshl_b32 s41, s25, 1"); a("s_lshr_b32 s42, s26, 3"); a("s_add_u32 s41, s41, s42"); a("s_lshl_b32 s41, s41, 10"); a(f"s_add_u32 s41, s41, {WS_ML}")
    a(f"v_lshlrev_b32 v{vML}, 4, v0"); a(f"v_add_u32 v{vML}, s41, v{vML}")
    a("s_lshl_b32 s41, s25, 4"); a("s_add_u32 s41, s41, s26"); a("s_lshl_b32 s41, s41, 13"); a(f"s_add_u32 s41, s41, {WS_OP}")
    a(f"v_lshlrev_b32 v{vO}, 4, v0"); a(f"v_add_u32 v{vO}, s41, v{vO}")
    a(f"v_and_b32 v{vAP}, 15, v0"); a(f"v_lshlrev_b32 v{vAP}, 6, v{vAP}"); a("v_bfe_u32 v10, v0, 4, 1"); a(f"v_lshl_add_u32 v{vAP}, v10, 5, v{vAP}")
    a("v_lshrrev_b32 v10, 5, v0"); a(f"v_lshl_add_u32 v{vAP}, v10, 4, v{vAP}")
    a("s_mul_i32 s41, s2, 4608"); a(f"s_add_u32 s41, s41, {WS_AP}"); a(f"v_add_u32 v{vAP}, s41, v{vAP}")
    vBP = 10
    a(f"v_lshrrev_b32 v{vBP}, 3, v0"); a(f"v_lshlrev_b32 v{vBP}, 2, v{vBP}")
    BS0, BS1, XC = 12, 13, 14
    a("s_sub_u32 s50, s2, 184")
    a("v_and_b32 v24, 3, v0"); a("v_lshlrev_b32 v24, 2, v24"); a("s_lshl_b32 s51, s50, 4"); a("v_add_u32 v24, s51, v24")
    a(f"v_mov_b32 v{vFin}, v24")
    a("v_lshrrev_b32 v25, 2, v0"); a("v_mul_u32_u24 v25, 4608, v25"); a("v_and_b32 v26, 3, v0"); a("v_lshl_add_u32 v25, v26, 4, v25")
    a("s_lshl_b32 s51, s50, 6"); a("v_add_u32 v25, s51, v25")
    a("s_cmp_lt_u32 s2, 184")
    a("s_cbranch_scc1 L_nofin1")
    srd(a, 36, 4, 5, 1152)
    a(f"buffer_load_dword v{XC}, v24, s[36:39], 0 offen")
    if cfg.TOUCH:
        a(f"v_mov_b32 v26, {LDS_PROG}")
        a(f"s_mov_b32 s43, {cfg.SPIN_MAX}")
        a.label("L_bwait")
        a("ds_read_b32 v27, v26"); a("s_waitcnt lgkmcnt(0)"); a("v_readfirstlane_b32 s44, v27")
        a("s_cmp_le_u32 s44, 11"); a("s_cbranch_scc1 L_bgo")
        spin_guard(a, 43, "L_bgo")
        a("s_sleep 32")
        a("s_branch L_bwait")
        a.label("L_bgo")
    if cfg.SKIP_FFN:
        a("v_mov_b32 v44, 0"); a("v_mov_b32 v45, 0")
    else:
        final_poll(a, cfg, WS_BP, 160, "b", 32)
    a("v_cvt_pk_bf16_f32 v27, v44, v45")
    a(f"v_lshlrev_b32 v{BS0}, 16, v27"); a(f"v_and_b32 v{BS1}, 0xffff0000, v27")
    a.label("L_nofin1")
    a("s_waitcnt vmcnt(0)")
    st.mark(5)
    a("s_barrier")
    a.label("L_tail")
    st.mark(6)
    ML = 160
    a(f"s_mov_b32 s43, {cfg.SPIN_MAX}")
    a.label("L_mlpoll")
    a(f"buffer_load_dwordx4 {vr(ML,4)}, v{vML}, s[28:31], 0 offen sc1")
    a("s_waitcnt vmcnt(0)")
    check_tags(a, [ML+1, ML+3], 27, 28, "L_mldone")
    spin_guard(a, 43, "L_mldone")
    a(f"s_sleep {cfg.MLSLEEP}")
    a("s_branch L_mlpoll")
    a.label("L_mldone")
    st.mark(7)
    OD = 168
    def oloads():
        for i in range(8):
            if i < 4: a(f"buffer_load_dwordx4 {vr(OD+4*i,4)}, v{vO}, s[28:31], 0 offen offset:{1024*i} sc1")
            else:
                if i == 4: a(f"v_add_u32 v29, 4096, v{vO}")
                a(f"buffer_load_dwordx4 {vr(OD+4*i,4)}, v29, s[28:31], 0 offen offset:{1024*(i-4)} sc1")
    oloads()
    a(f"v_mov_b32 v30, v{ML}")
    allreduce(a, "v_max_f32", [30], [31])
    a(f"v_sub_f32 v30, v{ML}, v30"); a(f"v_mul_f32 v30, {LOG2E:#x}, v30"); a("v_exp_f32 v30, v30")
    a("s_nop 0")
    a(f"v_mul_f32 v32, v30, v{ML+2}")
    allreduce(a, "v_add_f32", [32], [31])
    recip(a, 33, 32, 31)
    div_uniform(a, 34, 30, 32, 33, 31)
    WV = 36
    for i in range(8):
        a(f"v_add_u32 v35, {32*i}, v{vBP}")
        a(f"ds_bpermute_b32 v{WV+i}, v35, v34")
    a(f"s_mov_b32 s43, {cfg.SPIN_MAX}")
    a.label("L_opoll")
    a("s_waitcnt vmcnt(0)")
    check_tags(a, [OD+4*i+k for i in range(8) for k in (1, 3)], 27, 28, "L_odone")
    spin_guard(a, 43, "L_odone")
    oloads()
    a("s_branch L_opoll")
    a.label("L_odone")
    st.mark(8)
    a("s_waitcnt lgkmcnt(0)")
    a(f"v_mul_f32 v44, v{WV}, v{OD}"); a(f"v_mul_f32 v45, v{WV}, v{OD+2}")
    for i in range(1, 8):
        a(f"v_fma_f32 v44, v{WV+i}, v{OD+4*i}, v44"); a(f"v_fma_f32 v45, v{WV+i}, v{OD+4*i+2}, v45")
    allreduce(a, "v_add_f32", [44, 45], [27, 28], rors=(8,))
    a("v_cvt_pk_bf16_f32 v46, v44, v45")
    AW = 48; ACC = 200
    for rb in range(4):
        A = AW + 4 * rb
        if rb == 0: a.nop(2)
        a(f"v_mov_b32_dpp v47, v46 row_newbcast:{rb} row_mask:0x3 bank_mask:0xf")
        a(f"v_mov_b32_dpp v47, v46 row_newbcast:{4+rb} row_mask:0xc bank_mask:0xf")
        for d in range(4): a(f"v_perm_b32 v{A+d}, v47, v47, v{SELW+d}")
    ST = 224
    for k in range(3):
        a(f"v_mov_b32 v{ST+4*k+1}, s24"); a(f"v_mov_b32 v{ST+4*k+3}, s24")
    def mf(cb):
        for rb in range(4):
            a(f"v_mfma_f32_16x16x32_bf16 {vr(ACC+4*cb,4)}, {vr(AW+4*rb,4)}, {vr(WO+4*(rb*5+cb),4)}, {'0' if rb == 0 else vr(ACC+4*cb,4)}")
    def stre(cb):
        R = ACC + 4*cb
        S = ST + 4 * (cb % 3)
        a(f"v_permlane32_swap_b32 v{R}, v{R+2}"); a(f"v_permlane32_swap_b32 v{R+1}, v{R+3}")
        a("s_nop 0")
        a(f"v_mov_b32 v{S}, v{R}"); a(f"v_mov_b32 v{S+2}, v{R+1}")
        if cb == 4:
            a("s_mov_b32 exec_lo, 0x00ff00ff"); a("s_mov_b32 exec_hi, 0x00ff00ff")
        off = 1024 * cb
        if off < 4096:
            a(f"buffer_store_dwordx4 {vr(S,4)}, v{vAP}, s[28:31], 0 offen offset:{off} sc0 sc1")
        else:
            a("s_movk_i32 s41, 0x1000")
            a(f"buffer_store_dwordx4 {vr(S,4)}, v{vAP}, s[28:31], s41 offen sc0 sc1")
    mf(0); mf(1); mf(2)
    stre(0)
    mf(3)
    stre(1)
    mf(4)
    stre(2)
    a.nop(4)
    stre(3)
    a.nop(4)
    stre(4)
    a("s_mov_b64 exec, -1")
    st.mark(9)
    a("s_cmp_lt_u32 s2, 184")
    a("s_cbranch_scc1 L_w4end")
    final_poll(a, cfg, WS_AP, 64, "a", 0)
    st.mark(10)
    a("v_cvt_pk_bf16_f32 v46, v44, v45")
    a("v_lshlrev_b32 v44, 16, v46"); a("v_and_b32 v45, 0xffff0000, v46")
    a(f"v_lshlrev_b32 v47, 16, v{XC}"); a(f"v_and_b32 v48, 0xffff0000, v{XC}")
    a("v_add_f32 v44, v47, v44"); a("v_add_f32 v45, v48, v45")
    a("v_cvt_pk_bf16_f32 v46, v44, v45")
    a("v_lshlrev_b32 v44, 16, v46"); a("v_and_b32 v45, 0xffff0000, v46")
    a(f"v_add_f32 v44, v44, v{BS0}"); a(f"v_add_f32 v45, v45, v{BS1}")
    a("v_cvt_pk_bf16_f32 v46, v44, v45")
    srd(a, 36, 20, 21, 1152)
    a("s_mov_b64 exec, 0xf")
    a(f"buffer_store_dword v46, v{vFin}, s[36:39], 0 offen")
    a("s_cmp_eq_u32 s50, 0")
    a("s_cbranch_scc0 L_noE")
    a("s_mov_b64 exec, 1")
    a("v_mov_b32 v47, s24"); a(f"v_mov_b32 v48, {WS_E}")
    a("buffer_store_dword v47, v48, s[28:31], 0 offen sc0 sc1")
    a.label("L_noE")
    a("s_mov_b64 exec, -1")
    st.mark(11)
    a.label("L_w4end")
    st.dump()
    a("s_endpgm")

if __name__ == "__main__":
    import argparse
    ap = argparse.ArgumentParser()
    ap.add_argument("-o", default="out.s")
    ap.add_argument("--set", action="append", default=[])
    args = ap.parse_args()
    cfg = Cfg()
    for kv in args.set:
        k, v = kv.split("=", 1)
        old = getattr(cfg, k)
        if isinstance(old, bool): v = v in ("1", "True", "true")
        elif isinstance(old, int): v = int(v, 0)
        setattr(cfg, k, v)
    open(args.o, "w").write(gen(cfg))
```

```python
import sys
from asmlib import Asm, vr, sr

NAME = "parallel_sum__gqa_block_cached__dense_activation_silu__decode"
NWG = 256

LDS_X = 0
LDS_XN = 131072
LDS_Q = LDS_XN + 1280
LDS_H = LDS_Q + 512
LDS_PROG = LDS_H + 256
LDS_F0 = LDS_PROG + 4
LDS_F1 = LDS_PROG + 8
LDS_REQ = LDS_PROG + 16
LDS_RSP = LDS_PROG + 32
LDS_FIN = 16384
LDS_R = 0
LDS_TOTAL = 134400

WS_E = 0
WS_QP = 0x1000
WS_CNT = 0x30000
WS_ML = 0x40000
WS_HP = 0x50000
WS_OP = 0x100000
WS_AP = 0x400000
WS_BP = 0x540000
WS_DIAG = 0x680000
WS_SIZE = 0x700000

SCALE = 0x3DB504F3
LOG2E = 0x3FB8AA3B
NEG_INF = 0xFF800000

class Cfg:
    D = 6
    MULT = 677
    STAMPS = False
    KFLAGS = "nt"
    VFLAGS = "nt"
    WFLAGS = "nt"
    SPIN_MAX = 200000
    TOUCH = True
    PREBAR = 34
    NS = 28
    CHUNK = 230
    TOUCH_WGS = 32
    SRVSLEEP = 2
    FD = 8
    BWAIT = 22
    GHIGH = True
    STF = "sc0 sc1"
    GSLEEP = 3
    SKIP_FFN = False
    SKIP_BP = False
    SKIP_COMPUTE = False
    SKIP_WO = False
    D0 = 3
    N0 = 10
    W1_AFTER = True
    MLSLEEP = 2

def srd(a, dst, lo, hi, size):
    a(f"s_mov_b32 s{dst}, s{lo}")
    a(f"s_and_b32 s{dst+1}, s{hi}, 0xffff")
    a(f"s_mov_b32 s{dst+2}, {size}")
    a(f"s_mov_b32 s{dst+3}, 0x20000")

def allreduce(a, op, regs, tmps, rors=(8, 4, 2, 1), cross=True):
    n = len(regs)
    assert tmps is not None or not cross
    for k in rors:
        a.nop(max(0, 2 - (n - 1)))
        for r in regs:
            a(f"{op}_dpp v{r}, v{r}, v{r} row_ror:{k} row_mask:0xf bank_mask:0xf")
    if cross:
        for sw in ("v_permlane16_swap_b32", "v_permlane32_swap_b32"):
            for r, t in zip(regs, tmps):
                a(f"v_mov_b32 v{t}, v{r}")
            a.nop(2)
            for r, t in zip(regs, tmps):
                a(f"{sw} v{r}, v{t}")
            a.nop(1)
            for r, t in zip(regs, tmps):
                a(f"{op} v{r}, v{r}, v{t}")

class Stamps:
    def __init__(self, a, on):
        self.a = a; self.on = on
    def mark(self, i):
        if self.on:
            self.a(f"s_memrealtime s[{64+2*i}:{65+2*i}]")
    def init(self):
        if self.on:
            for i in range(16):
                self.a(f"s_mov_b64 s[{64+2*i}:{65+2*i}], 0")
    def dump(self):
        if not self.on: return
        a = self.a
        a("s_waitcnt lgkmcnt(0)")
        a("s_lshl_b32 s62, s2, 3"); a("s_add_u32 s62, s62, s3"); a("s_lshl_b32 s62, s62, 7"); a(f"s_add_u32 s62, s62, {WS_DIAG}")
        a("s_mov_b64 exec, 1")
        a("v_mov_b32 v250, 0")
        for i in range(0, 16, 2):
            for k in range(4):
                a(f"v_mov_b32 v{252+k}, s{64+2*i+k}")
            a(f"buffer_store_dwordx4 v[252:255], v250, s[28:31], s62 offen offset:{i*8}")
            a("s_nop 1")
        a("s_waitcnt vmcnt(0)")
        a("s_mov_b64 exec, -1")

def spin_guard(a, cnt_s, fail_label):
    a(f"s_sub_u32 s{cnt_s}, s{cnt_s}, 1")
    a(f"s_cbranch_scc1 {fail_label}")

def lds_flag_wait(a, addr, cfg, name):
    a(f"v_mov_b32 v2, {addr}")
    a(f"s_mov_b32 s43, {cfg.SPIN_MAX}")
    a.label(f"L_{name}")
    a("ds_read_b32 v3, v2"); a("s_waitcnt lgkmcnt(0)"); a("v_readfirstlane_b32 s44, v3")
    a("s_cmp_eq_u32 s44, s24"); a(f"s_cbranch_scc1 L_{name}_ok")
    spin_guard(a, 43, f"L_{name}_ok")
    a("s_sleep 1")
    a(f"s_branch L_{name}")
    a.label(f"L_{name}_ok")

def lds_flag_set(a, addr, t0, t1):
    a(f"v_mov_b32 v{t0}, {addr}"); a(f"v_mov_b32 v{t1}, s24"); a(f"ds_write_b32 v{t0}, v{t1}")

def pv_selectors(a, SEL, mode, t):
    t0, t1, t2, t3 = t
    if mode == "pv":
        a(f"v_bfe_u32 v{t0}, v0, 3, 1"); a(f"v_lshlrev_b32 v{t0}, 1, v{t0}")
    elif mode == "lo":
        a(f"v_mov_b32 v{t0}, 0")
    elif mode == "wo":
        a(f"v_bfe_u32 v{t0}, v0, 4, 1"); a(f"v_lshlrev_b32 v{t0}, 1, v{t0}")
    a(f"v_add_u32 v{t1}, 1, v{t0}"); a(f"v_lshl_or_b32 v{t0}, v{t1}, 8, v{t0}")
    a(f"v_or_b32 v{t1}, 0x0c0c0000, v{t0}")
    a(f"v_lshlrev_b32 v{t2}, 16, v{t0}"); a(f"v_or_b32 v{t2}, 0x0c0c, v{t2}")
    a(f"v_and_b32 v{t3}, 1, v0"); a(f"v_cmp_eq_u32 vcc, 1, v{t3}")
    a("s_nop 1")
    a(f"v_cndmask_b32 v{t0}, v{t1}, v{t2}, vcc")
    a(f"v_bfe_u32 v{t3}, v0, 1, 2")
    if mode == "wo":
        a(f"v_bfe_u32 v{t2}, v0, 3, 1"); a(f"v_lshl_or_b32 v{t3}, v{t2}, 2, v{t3}")
    a(f"v_mov_b32 v{t1}, 0x0c0c0c0c")
    for d in range(4):
        a(f"v_cmp_eq_u32 vcc, {d}, v{t3}")
        a("s_nop 1")
        a(f"v_cndmask_b32 v{SEL+d}, v{t1}, v{t0}, vcc")

def div_uniform(a, q, num, den, r, e):
    a(f"v_mul_f32 v{q}, v{num}, v{r}")
    a(f"v_fma_f32 v{e}, -v{q}, v{den}, v{num}")
    a(f"v_fma_f32 v{q}, v{e}, v{r}, v{q}")

def recip(a, r, den, e):
    a(f"v_rcp_f32 v{r}, v{den}")
    a("s_nop 0")
    a(f"v_fma_f32 v{e}, -v{den}, v{r}, 1.0")
    a(f"v_fma_f32 v{r}, v{e}, v{r}, v{r}")

def layernorm(a, X, F, out, tmp):
    t = tmp
    for i in range(5):
        a(f"v_lshlrev_b32 v{F+2*i}, 16, v{X+i}"); a(f"v_and_b32 v{F+2*i+1}, 0xffff0000, v{X+i}")
    S = t; T = t + 1; N = t + 2; R = t + 3; E = t + 4; M = t + 5; DEN = t + 6; A = t + 7
    a(f"v_add_f32 v{S}, v{F}, v{F+1}")
    for i in range(2, 10): a(f"v_add_f32 v{S}, v{S}, v{F+i}")
    allreduce(a, "v_add_f32", [S], [T])
    a(f"v_mov_b32 v{N}, 0x44100000")
    a(f"v_mov_b32 v{R}, 0x3ae38e39")
    div_uniform(a, M, S, N, R, E)
    a(f"v_mov_b32 v{S}, 0")
    for i in range(8):
        a(f"v_sub_f32 v{T}, v{F+i}, v{M}"); a(f"v_fma_f32 v{S}, v{T}, v{T}, v{S}")
    a("s_mov_b32 exec_hi, 0")
    for i in range(8, 10):
        a(f"v_sub_f32 v{T}, v{F+i}, v{M}"); a(f"v_fma_f32 v{S}, v{T}, v{T}, v{S}")
    a("s_mov_b32 exec_hi, -1")
    allreduce(a, "v_add_f32", [S], [T])
    div_uniform(a, A, S, N, R, E)
    a(f"v_cvt_pk_bf16_f32 v{T}, v{A}, v{M}")
    a(f"v_lshlrev_b32 v{A}, 16, v{T}"); a(f"v_and_b32 v{M}, 0xffff0000, v{T}")
    a(f"v_add_f32 v{A}, 0x3727c5ac, v{A}")
    a(f"v_cvt_pk_bf16_f32 v{T}, v{A}, v{A}"); a(f"v_lshlrev_b32 v{A}, 16, v{T}")
    a(f"v_sqrt_f32 v{A}, v{A}")
    a("s_nop 0")
    a(f"v_cvt_pk_bf16_f32 v{T}, v{A}, v{A}"); a(f"v_lshlrev_b32 v{DEN}, 16, v{T}")
    recip(a, R, DEN, E)
    for i in range(5):
        x0, x1 = F + 2*i, F + 2*i + 1
        a(f"v_sub_f32 v{x0}, v{x0}, v{M}"); a(f"v_sub_f32 v{x1}, v{x1}, v{M}")
        a(f"v_cvt_pk_bf16_f32 v{T}, v{x0}, v{x1}")
        a(f"v_lshlrev_b32 v{x0}, 16, v{T}"); a(f"v_and_b32 v{x1}, 0xffff0000, v{T}")
        a(f"v_mul_f32 v{S}, v{x0}, v{R}"); a(f"v_mul_f32 v{A}, v{x1}, v{R}")
        a(f"v_fma_f32 v{E}, -v{S}, v{DEN}, v{x0}"); a(f"v_fma_f32 v{N}, -v{A}, v{DEN}, v{x1}")
        a(f"v_fma_f32 v{S}, v{E}, v{R}, v{S}"); a(f"v_fma_f32 v{A}, v{N}, v{R}, v{A}")
        a(f"v_cvt_pk_bf16_f32 v{out+i}, v{S}, v{A}")

def fold40(a, regs, tmps):
    for r, t in zip(regs, tmps): a(f"v_mov_b32 v{t}, v{r}")
    a.nop(2)
    for r, t in zip(regs, tmps): a(f"v_permlane32_swap_b32 v{r}, v{t}")
    a.nop(2)
    for r, t in zip(regs, tmps):
        a(f"v_add_f32_dpp v{r}, v{t}, v{r} row_ror:8 row_mask:0xf bank_mask:0xf")

def piece_gemv(a, W, XV, SEL, AX, DQ, nload_after, n=18):
    for k in range(n):
        A = AX + 4 * (k & 1)
        for d in range(4): a(f"v_perm_b32 v{A+d}, v{XV+k}, v{XV+k}, v{SEL+d}")
        a(f"s_waitcnt vmcnt({nload_after(k)})")
        a("s_nop 0")
        a(f"v_mfma_f32_16x16x32_bf16 {vr(DQ,4)}, {vr(A,4)}, {vr(W+4*k,4)}, {'0' if k == 0 else vr(DQ,4)}")

def publish_piece(a, DQ, T, soff):
    a.nop(2)
    a(f"v_mov_b32_dpp v{DQ}, v{DQ+2} row_ror:8 row_mask:0xf bank_mask:0xc")
    a(f"v_mov_b32_dpp v{DQ+1}, v{DQ+3} row_ror:8 row_mask:0xf bank_mask:0xc")
    a(f"v_mov_b32 v{T}, v{DQ}"); a(f"v_mov_b32 v{T+1}, s24"); a(f"v_mov_b32 v{T+2}, v{DQ+1}"); a(f"v_mov_b32 v{T+3}, s24")

def piece_addr(a, v, t):
    a(f"v_and_b32 v{v}, 7, v0"); a(f"v_lshlrev_b32 v{v}, 6, v{v}")
    a(f"v_bfe_u32 v{t}, v0, 4, 1"); a(f"v_lshl_add_u32 v{v}, v{t}, 5, v{v}")
    a(f"v_bfe_u32 v{t}, v0, 3, 1"); a(f"v_lshl_add_u32 v{v}, v{t}, 4, v{v}")

def check_tags(a, tagregs, t0, t1, ok_label, full="-1", tmp_s=44):
    regs = list(tagregs)
    a(f"v_min_u32 v{t0}, v{regs[0]}, v{regs[1]}"); a(f"v_max_u32 v{t1}, v{regs[0]}, v{regs[1]}")
    i = 2
    while i + 1 < len(regs):
        a(f"v_min3_u32 v{t0}, v{t0}, v{regs[i]}, v{regs[i+1]}"); a(f"v_max3_u32 v{t1}, v{t1}, v{regs[i]}, v{regs[i+1]}")
        i += 2
    if i < len(regs):
        a(f"v_min_u32 v{t0}, v{t0}, v{regs[i]}"); a(f"v_max_u32 v{t1}, v{t1}, v{regs[i]}")
    a(f"v_cmp_eq_u32 vcc, s24, v{t0}"); a(f"v_cmp_eq_u32 s[{tmp_s}:{tmp_s+1}], s24, v{t1}")
    a(f"s_and_b64 vcc, vcc, s[{tmp_s}:{tmp_s+1}]")
    a(f"s_cmp_eq_u64 vcc, {full}")
    a(f"s_cbranch_scc1 {ok_label}")

def gen(cfg):
    a = Asm()
    st = Stamps(a, cfg.STAMPS)
    D = cfg.D
    a.raw(f"; @launch grid=({NWG},1,1) block=(512,1,1) lds={LDS_TOTAL}")
    a.raw('.amdgcn_target "amdgcn-amd-amdhsa--gfx950"')
    a.raw(".text")
    a.raw(f".globl {NAME}_kernel")
    a.raw(".p2align 8")
    a.raw(f".type {NAME}_kernel,@function")
    a.label(f"{NAME}_kernel")
    a(f"s_cmp_ge_u32 s2, {NWG}")
    a("s_cbranch_scc1 L_end")
    st.init()
    st.mark(0)
    a("s_load_dwordx16 s[4:19], s[0:1], 0")
    a("s_load_dwordx2 s[20:21], s[0:1], 64")
    a("s_load_dwordx2 s[22:23], s[0:1], 80")
    a("v_lshrrev_b32 v1, 6, v0")
    a("v_and_b32 v0, 63, v0")
    a("v_readfirstlane_b32 s3, v1")
    if cfg.GHIGH:
        a("s_lshr_b32 s25, s2, 4")
        a("s_and_b32 s26, s2, 15")
    else:
        a("s_and_b32 s25, s2, 15")
        a("s_lshr_b32 s26, s2, 4")
    a("s_cmp_ge_u32 s3, 4")
    a("s_cbranch_scc1 L_helper")
    gen_stream(a, cfg, st)
    gen_helpers(a, cfg, st)
    a.label("L_end")
    a("s_endpgm")
    a.label("L_codeend")
    a.raw(".section .rodata,\"a\"")
    a.raw(".p2align 6")
    a.raw(f".amdhsa_kernel {NAME}_kernel")
    a.raw("  .amdhsa_next_free_vgpr 256")
    a.raw("  .amdhsa_next_free_sgpr 102")
    a.raw("  .amdhsa_accum_offset 256")
    a.raw("  .amdhsa_group_segment_fixed_size 0")
    a.raw("  .amdhsa_kernarg_size 88")
    a.raw("  .amdhsa_user_sgpr_count 2")
    a.raw("  .amdhsa_user_sgpr_kernarg_segment_ptr 1")
    a.raw("  .amdhsa_system_sgpr_workgroup_id_x 1")
    a.raw("  .amdhsa_float_denorm_mode_32 3")
    a.raw("  .amdhsa_float_denorm_mode_16_64 3")
    a.raw(".end_amdhsa_kernel")
    out = []
    for ln in a.text().split("\n"):
        if "buffer_store" in ln and ln.rstrip().endswith("sc0 sc1"):
            ln = ln.rstrip()[:-7] + cfg.STF
        out.append(ln)
    return "\n".join(out)

def gen_stream(a, cfg, st):
    D = cfg.D
    NS = cfg.NS
    POOL = (32 - NS) * 64
    vK0, vV0, vV1 = 2, 3, 4
    vLds = 5
    RING = 64
    AQK = 128
    DA, OO = 160, 168
    APV = 172
    SEL = 180
    PK, BC, S0, S1 = 184, 185, 186, 187
    P0, P1 = 188, 190
    L0, L1 = 192, 193
    T0, T1, T2, T3, T4, T5 = 194, 195, 196, 197, 198, 199
    STG = 200
    vMB = 232
    sOff, sM0, sM1 = 40, 42, 43
    sStop = 41
    sLo, sHi = 44, 46
    sK, sLdsB, sU = 48, 50, 51
    HT = 8192
    stride = (64 * cfg.MULT * HT) % (1 << 24)
    MASK = (1 << 24) - 1

    a(f"v_and_b32 v8, 7, v0")
    a(f"v_lshlrev_b32 v{vK0}, 10, v8")
    a(f"v_bfe_u32 v8, v0, 3, 1")
    a(f"v_lshl_add_u32 v{vK0}, v8, 6, v{vK0}")
    a(f"v_lshrrev_b32 v9, 4, v0")
    a(f"v_lshl_add_u32 v{vK0}, v9, 4, v{vK0}")
    a(f"v_lshlrev_b32 v{vV0}, 4, v0")
    a(f"v_add_u32 v{vV1}, 4096, v{vV0}")
    a(f"s_lshl_b32 s{sU}, s26, 2"); a(f"s_add_u32 s{sU}, s{sU}, s3")
    a(f"s_mul_i32 s{sOff}, s{sU}, {(cfg.MULT * HT) % (1 << 32)}")
    a(f"s_and_b32 s{sOff}, s{sOff}, {MASK}")
    a(f"s_lshl_b32 s{sLdsB}, s3, 15")
    a(f"s_lshl_b32 s52, s25, 24")
    a("s_waitcnt lgkmcnt(0)")
    a("s_add_u32 s32, s6, s52"); a("s_addc_u32 s33, s7, 0"); a("s_and_b32 s33, s33, 0xffff"); a(f"s_mov_b32 s34, {1<<24}"); a("s_mov_b32 s35, 0x20000")
    a("s_add_u32 s36, s8, s52"); a("s_addc_u32 s37, s9, 0"); a("s_and_b32 s37, s37, 0xffff"); a(f"s_mov_b32 s38, {1<<24}"); a("s_mov_b32 s39, 0x20000")

    def adv_static():
        a(f"s_add_u32 s{sOff}, s{sOff}, {stride}"); a(f"s_and_b32 s{sOff}, s{sOff}, {MASK}")
    def load_params(i):
        if i < 8:
            return ("K", vK0, (i >> 1) * 256 + (i & 1) * 128)
        rr = i - 8
        return ("V", vV0 if rr < 4 else vV1, (rr & 3) * 1024)
    def issue(I, lds=False, noadv=False):
        i = I % 16
        kind, vo, io = load_params(i)
        if i == 0 and I > 0 and not noadv: adv_static()
        srdr = "s[32:35]" if kind == "K" else "s[36:39]"
        fl = cfg.KFLAGS if kind == "K" else cfg.VFLAGS
        if lds:
            a(f"s_add_u32 m0, s{sLdsB}, {1024 * I - io}")
            a("s_nop 0")
            a(f"buffer_load_dwordx4 v{vo}, {srdr}, s{sOff} offen offset:{io} {fl} lds")
        else:
            r = RING + i * 4
            a(f"buffer_load_dwordx4 {vr(r,4)}, v{vo}, {srdr}, s{sOff} offen offset:{io} {fl}")

    PRE = cfg.PREBAR
    ENTRY = 7
    LAST = 32 + ENTRY + D
    assert PRE <= LAST and D <= 9
    D0 = min(cfg.D0, D)
    for I in range(PRE):
        dd = D0 if I < cfg.N0 else D
        if I >= dd:
            a(f"s_waitcnt vmcnt({dd-1})")
            if I == D0: st.mark(1)
        issue(I, lds=(I < 32))
        if I == D0 - 1:
            a(f"s_load_dword s24, s[22:23], {WS_E}")
            srd(a, 28, 22, 23, WS_SIZE)
            a(f"v_lshlrev_b32 v{vLds}, 4, v0"); a(f"v_add_u32 v{vLds}, s{sLdsB}, v{vLds}")
            a(f"s_mov_b32 s{sLo}, 0x00ff00ff"); a(f"s_mov_b32 s{sLo+1}, 0x00ff00ff")
            a(f"s_mov_b32 s{sHi}, 0"); a(f"s_mov_b32 s{sHi+1}, -1")
            pv_selectors(a, SEL, mode="pv", t=(8, 9, 10, 11))
            for r in range(4): a(f"v_mov_b32 v{OO+r}, 0")
            a(f"v_mov_b32 v{L0}, 0"); a(f"v_mov_b32 v{L1}, 0")
            a(f"s_mov_b32 s{sM0}, {NEG_INF:#x}"); a(f"s_mov_b32 s{sM1}, {NEG_INF:#x}")
            a(f"s_mov_b32 s{sStop}, 0")
            a(f"s_lshl_b32 s53, s3, 2"); a(f"s_add_u32 s53, s53, {LDS_REQ}"); a(f"v_mov_b32 v{vMB}, s53")
            a("v_bfe_u32 v8, v0, 1, 1"); a("v_lshlrev_b32 v8, 8, v8")
            a("v_and_b32 v9, 1, v0"); a("v_lshl_add_u32 v8, v9, 6, v8")
            a("v_lshrrev_b32 v9, 4, v0"); a("v_lshl_add_u32 v8, v9, 4, v8")
            a(f"v_add_u32 v20, {LDS_Q}, v8")
    st.mark(2)
    a("s_waitcnt lgkmcnt(0)")
    a("s_add_u32 s24, s24, 1")
    a("s_barrier")
    st.mark(3)

    issued = PRE
    arrived = PRE - D
    def need(idx):
        nonlocal arrived
        if idx >= arrived:
            a(f"s_waitcnt vmcnt({issued - 1 - idx})")
            arrived = idx + 1
    def step_issue():
        nonlocal issued, arrived
        tgt = issued - D
        if tgt >= arrived:
            a(f"s_waitcnt vmcnt({D-1})")
            arrived = tgt + 1
        issue(issued, lds=(issued < 32))
        issued += 1

    def mfma_k(i, breg):
        t = (i >> 1) & 3; c = i & 1
        A = AQK + (t * 2 + c) * 4
        cin = "0" if i == 0 else vr(DA, 4)
        a(f"v_mfma_f32_16x16x32_bf16 {vr(DA,4)}, {vr(A,4)}, {vr(breg,4)}, {cin}")
    def score_a(s0, s1):
        a(f"v_cndmask_b32 v{P0}, v{DA+1}, v{DA+0}, s[{sLo}:{sLo+1}]")
        a(f"v_cndmask_b32 v{P1}, v{DA+3}, v{DA+2}, s[{sLo}:{sLo+1}]")
        a("s_nop 0")
        a(f"v_add_f32_dpp v{s0}, v{P0}, v{P0} row_ror:8 row_mask:0xf bank_mask:0xf")
        a(f"v_add_f32_dpp v{s1}, v{P1}, v{P1} row_ror:8 row_mask:0xf bank_mask:0xf")
        a(f"v_cvt_pk_bf16_f32 v{T0}, v{s0}, v{s1}")
        a(f"v_lshlrev_b32 v{s0}, 16, v{T0}")
        a(f"v_and_b32 v{s1}, 0xffff0000, v{T0}")
        a(f"v_mul_f32 v{s0}, {SCALE:#x}, v{s0}")
        a(f"v_mul_f32 v{s1}, {SCALE:#x}, v{s1}")
        a(f"v_cvt_pk_bf16_f32 v{T0}, v{s0}, v{s1}")
        a(f"v_lshlrev_b32 v{s0}, 16, v{T0}")
        a(f"v_and_b32 v{s1}, 0xffff0000, v{T0}")
    def max_update(x0, x1):
        a(f"v_mov_b32 v{T0}, v{x0}"); a(f"v_mov_b32 v{T1}, v{x1}")
        allreduce(a, "v_max_f32", [T0, T1], [T2, T3])
        a(f"v_max_f32 v{T0}, s{sM0}, v{T0}"); a(f"v_max_f32 v{T1}, s{sM1}, v{T1}")
        a(f"v_sub_f32 v{T2}, s{sM0}, v{T0}"); a(f"v_sub_f32 v{T3}, s{sM1}, v{T1}")
        a(f"v_readfirstlane_b32 s{sM0}, v{T0}"); a(f"v_readfirstlane_b32 s{sM1}, v{T1}")
        a(f"v_mul_f32 v{T2}, {LOG2E:#x}, v{T2}"); a(f"v_mul_f32 v{T3}, {LOG2E:#x}, v{T3}")
        a(f"v_exp_f32 v{T2}, v{T2}"); a(f"v_exp_f32 v{T3}, v{T3}")
        a("s_nop 0")
        a(f"v_mul_f32 v{L0}, v{L0}, v{T2}"); a(f"v_mul_f32 v{L1}, v{L1}, v{T3}")
        a(f"v_cndmask_b32 v{T4}, v{T2}, v{T3}, s[{sHi}:{sHi+1}]")
        for r in range(4): a(f"v_mul_f32 v{OO+r}, v{OO+r}, v{T4}")
    def exp_b(s0, s1, pk):
        a(f"v_subrev_f32 v{s0}, s{sM0}, v{s0}"); a(f"v_subrev_f32 v{s1}, s{sM1}, v{s1}")
        a(f"v_mul_f32 v{s0}, {LOG2E:#x}, v{s0}"); a(f"v_mul_f32 v{s1}, {LOG2E:#x}, v{s1}")
        a(f"v_exp_f32 v{s0}, v{s0}"); a(f"v_exp_f32 v{s1}, v{s1}")
        a("s_nop 0")
        a(f"v_add_f32 v{L0}, v{L0}, v{s0}"); a(f"v_add_f32 v{L1}, v{L1}, v{s1}")
        a(f"v_cvt_pk_bf16_f32 v{pk}, v{s0}, v{s1}")
    def prep_v(n, pk, aset=0):
        A = APV + 4 * aset
        a(f"v_mov_b32_dpp v{BC}, v{pk} row_newbcast:{n} row_mask:0xf bank_mask:0xf")
        for d in range(4):
            a(f"v_perm_b32 v{A+d}, v{BC}, v{BC}, v{SEL+d}")
    def mfma_v(breg, aset=0):
        A = APV + 4 * aset
        a(f"v_mfma_f32_16x16x32_bf16 {vr(OO,4)}, {vr(A,4)}, {vr(breg,4)}, {vr(OO,4)}")

    work = []
    def ldsread(I):
        need(I)
        a(f"ds_read_b128 {vr(STG + 4*(I % 8), 4)}, v{vLds} offset:{1024 * I}")
    def w_first():
        a(f"ds_read_b128 v[12:15], v20"); a(f"ds_read_b128 v[16:19], v20 offset:128")
        for k in range(8): ldsread(k)
    work.append((60, w_first))
    def w_aqk(t):
        def f():
            m = 0x000F000F << (4 * t)
            a(f"s_mov_b32 s54, {m:#x}"); a(f"s_mov_b32 s55, {m:#x}")
            if t == 0: a("s_waitcnt lgkmcnt(8)")
            for c in range(2):
                for d in range(4):
                    a(f"v_cndmask_b32 v{AQK + (t*2+c)*4 + d}, 0, v{12 + 4*c + d}, s[54:55]")
        return f
    for t in range(4): work.append((45 if t else 120, w_aqk(t)))
    def w_item(I):
        def f():
            i = I % 16
            rem = min(7, 31 - I)
            if i < 8:
                a(f"s_waitcnt lgkmcnt({rem})")
                mfma_k(i, STG + 4*(I % 8))
            else:
                prep_v(i - 8, PK, i & 1)
                a(f"s_waitcnt lgkmcnt({rem})")
                a("s_nop 0")
                mfma_v(STG + 4*(I % 8), i & 1)
            if I + 8 < 32: ldsread(I + 8)
        return f
    def w_sm():
        a.nop(8); score_a(S0, S1)
    def w_eb():
        a.nop(1); exp_b(S0, S1, PK); a.nop(2)
    for un in range(2):
        for i in range(8): work.append((28, w_item(16*un + i)))
        work.append((100, w_sm))
        work.append((230, lambda: max_update(S0, S1)))
        work.append((60, w_eb))
        for i in range(8, 16): work.append((50, w_item(16*un + i)))
    step_issue()
    acc = 0
    for cost, fn in work:
        fn(); acc += cost
        if acc >= cfg.CHUNK and issued < LAST:
            step_issue(); acc = 0
    while issued < LAST: step_issue()
    for i in range(ENTRY):
        need(32 + i)
        mfma_k(i, RING + i * 4)
    st.mark(4)
    a(f"s_mov_b32 s{sK}, 2")
    if NS <= 3: raise Exception
    a("s_branch L_loop_entry")
    a.raw(".p2align 6")
    a.label("L_loop")
    ISW = 16 - D
    for i in range(16):
        if i == ENTRY: a.label("L_loop_entry")
        slot = RING + i * 4
        if i >= 8 and not cfg.SKIP_COMPUTE:
            if i == 8: a("s_nop 1")
            prep_v(i - 8, PK)
        a(f"s_waitcnt vmcnt({D-1})")
        if i == ISW:
            a(f"s_add_u32 s53, s{sK}, 1")
            a(f"s_cmp_ge_u32 s53, {NS - 1}")
            a("s_cbranch_scc1 L_dyn")
            adv_static()
            a.label("L_dynback")
        issue((i + D) % 16, noadv=True)
        if not cfg.SKIP_COMPUTE:
            if i < 8: mfma_k(i, slot)
            else: mfma_v(slot)
        if i == 7:
            if not cfg.SKIP_COMPUTE:
                a.nop(8)
                score_a(S0, S1)
                a(f"v_cmp_lt_f32 vcc, s{sM0}, v{S0}")
                a(f"v_cmp_lt_f32 s[54:55], s{sM1}, v{S1}")
                a("s_or_b64 vcc, vcc, s[54:55]")
                a("s_cbranch_scc1 L_rare")
                a.label("L_back")
                exp_b(S0, S1, PK)
            a(f"v_mov_b32 v{T0}, s{sK}"); a(f"v_mov_b32 v{T1}, {LDS_PROG}")
            a(f"ds_write_b32 v{T1}, v{T0}")
    a(f"s_add_u32 s{sK}, s{sK}, 1")
    if cfg.STAMPS:
        for k in range(8):
            lb = a.newlabel("L_tm")
            a(f"s_cmp_eq_u32 s{sK}, {4*(k+1)}"); a(f"s_cbranch_scc0 {lb}"); st.mark(8 + k); a.label(lb)
    a(f"s_cmp_eq_u32 s{sStop}, 0")
    a("s_cbranch_scc1 L_loop")
    st.mark(5)
    a.nop(8)
    a(f"s_lshl_b32 s53, s3, 11")
    a(f"v_lshlrev_b32 v{T5}, 4, v0"); a(f"v_add_u32 v{T5}, s53, v{T5}")
    a(f"ds_write_b128 v{T5}, {vr(OO,4)}")
    allreduce(a, "v_add_f32", [L0, L1], [T2, T3])
    a(f"v_mov_b32 v{STG+0}, s{sM0}"); a(f"v_mov_b32 v{STG+1}, s{sM1}")
    a(f"v_mul_f32 v{STG+2}, 0.5, v{L0}"); a(f"v_mul_f32 v{STG+3}, 0.5, v{L1}")
    a(f"v_mov_b32 v{T5}, s53")
    a("s_mov_b64 exec, 1")
    a(f"ds_write_b128 v{T5}, {vr(STG,4)} offset:1024")
    a("s_mov_b64 exec, -1")
    a("s_waitcnt lgkmcnt(0)")
    st.mark(6)
    a("s_barrier")
    a("s_cmp_lt_u32 s2, 184")
    a("s_cbranch_scc1 L_stream_end")
    a("s_sub_u32 s50, s2, 184")
    a("v_lshrrev_b32 v25, 2, v0"); a("v_mul_u32_u24 v25, 4608, v25"); a("v_and_b32 v26, 3, v0"); a("v_lshl_add_u32 v25, v26, 4, v25")
    a("s_lshl_b32 s51, s50, 6"); a("v_add_u32 v25, s51, v25")
    a(f"s_mul_i32 s52, s3, {64*4608}"); a(f"s_add_u32 s52, s52, {WS_AP}")
    a("s_barrier")
    a(f"s_mov_b32 s53, {cfg.SPIN_MAX}")
    a.label("L_apoll")
    a("s_mov_b32 s51, s52")
    for i in range(4):
        a(f"buffer_load_dwordx4 {vr(RING+4*i,4)}, v25, s[28:31], s51 offen sc1")
        if i < 3: a(f"s_add_u32 s51, s51, {16*4608}")
    a("s_waitcnt vmcnt(0)")
    check_tags(a, [RING+4*i+k for i in range(4) for k in (1, 3)], 27, 26, "L_adone", tmp_s=54)
    spin_guard(a, 53, "L_adone")
    a("s_branch L_apoll")
    a.label("L_adone")
    st.mark(7)
    a(f"v_add_f32 v28, v{RING}, v{RING+4}"); a(f"v_add_f32 v29, v{RING+2}, v{RING+6}")
    for i in range(2, 4):
        a(f"v_add_f32 v28, v28, v{RING+4*i}"); a(f"v_add_f32 v29, v29, v{RING+4*i+2}")
    allreduce(a, "v_add_f32", [28, 29], [27, 26], rors=(4, 8))
    a(f"s_lshl_b32 s51, s3, 5"); a(f"s_add_u32 s51, s51, {LDS_FIN}")
    a("v_lshlrev_b32 v27, 3, v0"); a("v_add_u32 v27, s51, v27")
    a("s_mov_b64 exec, 0xf")
    a("ds_write_b64 v27, v[28:29]")
    a("s_mov_b64 exec, -1")
    a("s_waitcnt lgkmcnt(0)")
    a("s_barrier")
    a.label("L_stream_end")
    st.dump()
    a("s_endpgm")

    if not cfg.SKIP_COMPUTE:
        a.label("L_rare")
        max_update(S0, S1)
        a("s_nop 1")
        a("s_branch L_back")

    a.label("L_dyn")
    a(f"s_cmp_ge_u32 s53, {NS}")
    a("s_cbranch_scc1 L_dyn2")
    adv_static()
    if POOL:
        a(f"v_mov_b32 v{T0}, {NS}")
        a(f"ds_write_b32 v{vMB}, v{T0}")
    a("s_branch L_dynback")
    a.label("L_dyn2")
    if POOL == 0:
        a("s_mov_b32 s34, 0"); a("s_mov_b32 s38, 0"); a(f"s_mov_b32 s{sStop}, 1")
        a("s_branch L_dynback")
    else:
        a(f"s_mov_b32 s54, {cfg.SPIN_MAX}")
        a.label("L_dynpoll")
        a(f"ds_read_b32 v{T0}, v{vMB} offset:16")
        a("s_waitcnt lgkmcnt(0)")
        a(f"v_readfirstlane_b32 s55, v{T0}")
        a("s_lshr_b32 s56, s55, 16")
        a("s_cmp_eq_u32 s56, s53")
        a("s_cbranch_scc1 L_dynok")
        a("s_sub_u32 s54, s54, 1")
        a("s_cbranch_scc0 L_dynpoll")
        a("s_mov_b32 s55, 0xffff")
        a.label("L_dynok")
        a("s_and_b32 s55, s55, 0xffff")
        a(f"s_cmp_ge_u32 s55, {POOL}")
        a("s_cbranch_scc1 L_dynstop")
        a(f"s_add_u32 s55, s55, {NS * 64}")
        a(f"s_mul_i32 s55, s55, {(cfg.MULT * HT) % (1 << 32)}")
        a(f"s_and_b32 s{sOff}, s55, {MASK}")
        a("s_add_u32 s53, s53, 1")
        a(f"v_mov_b32 v{T0}, s53")
        a(f"ds_write_b32 v{vMB}, v{T0}")
        a("s_branch L_dynback")
        a.label("L_dynstop")
        a("s_mov_b32 s34, 0"); a("s_mov_b32 s38, 0"); a(f"s_mov_b32 s{sStop}, 1")
        a("s_branch L_dynback")

def gen_helpers(a, cfg, st):
    a.raw(".p2align 6")
    a.label("L_helper")
    a("s_waitcnt lgkmcnt(0)")
    a(f"s_load_dword s24, s[22:23], {WS_E}")
    srd(a, 28, 22, 23, WS_SIZE)
    a("s_cmp_eq_u32 s3, 4"); a("s_cbranch_scc1 L_w4")
    a("s_cmp_eq_u32 s3, 5"); a("s_cbranch_scc1 L_w5")
    a("s_cmp_eq_u32 s3, 7")
    a("s_cbranch_scc0 L_not7")
    if cfg.TOUCH:
        a(f"s_cmp_ge_u32 s2, {cfg.TOUCH_WGS}")
        a("s_cbranch_scc1 L_t7done")
        a("s_getpc_b64 s[32:33]")
        a.label("L_pc7")
        a(f"s_sub_u32 s32, s32, L_pc7-{NAME}_kernel"); a("s_subb_u32 s33, s33, 0")
        a("s_and_b32 s33, s33, 0xffff"); a(f"s_mov_b32 s34, L_codeend-{NAME}_kernel"); a("s_mov_b32 s35, 0x20000")
        a("v_lshlrev_b32 v2, 4, v0")
        a("s_mov_b32 s36, 0")
        a.label("L_t7")
        a("buffer_load_dwordx4 v[4:7], v2, s[32:35], s36 offen")
        a("s_add_u32 s36, s36, 1024"); a("s_cmp_lt_u32 s36, s34"); a("s_cbranch_scc1 L_t7")
        a.label("L_t7done")
    a("s_waitcnt lgkmcnt(0)")
    a("s_add_u32 s24, s24, 1")
    a("s_cmp_eq_u32 s26, 0"); a("s_cbranch_scc0 L_gatherwait")
    a("s_lshl_b32 s36, s25, 8"); a(f"s_add_u32 s36, s36, {WS_CNT}")
    a("v_mov_b32 v8, 0"); a("v_mov_b32 v9, s24"); a("v_mov_b32 v2, 0")
    a("s_mov_b64 exec, 1")
    a("buffer_store_dwordx2 v[8:9], v2, s[28:31], s36 offen sc0 sc1")
    a("s_mov_b64 exec, -1")
    a("s_branch L_gatherwait")
    a.label("L_not7")
    a(f"v_lshlrev_b32 v2, 2, v0"); a(f"v_add_u32 v2, {LDS_REQ}, v2"); a("v_mov_b32 v3, 0")
    a("s_mov_b64 exec, 0xff"); a("ds_write_b32 v2, v3")
    a("s_mov_b64 exec, 1"); a(f"v_mov_b32 v2, {LDS_PROG}"); a("ds_write_b32 v2, v3")
    a("s_mov_b64 exec, -1")
    a("s_waitcnt lgkmcnt(0)")
    a("s_add_u32 s24, s24, 1")
    a("s_branch L_gatherwait")

    a.label("L_w4")
    srd(a, 32, 4, 5, 1152)
    srd(a, 36, 10, 11, 576 * 8192)
    a("v_lshlrev_b32 v2, 2, v0")
    for i in range(5):
        a(f"buffer_load_dword v{8+i}, v2, s[32:35], 0 offen offset:{256*i}")
    a("s_lshr_b32 s40, s2, 3"); a("s_bfe_u32 s41, s2, 0x10002"); a("s_lshl_b32 s41, s41, 5"); a("s_add_u32 s40, s40, s41")
    a("s_and_b32 s41, s2, 3")
    a(f"s_mul_i32 s42, s41, {144*8192}"); a("s_lshl_b32 s43, s40, 7"); a("s_add_u32 s42, s42, s43")
    a("v_lshrrev_b32 v3, 3, v0"); a("v_lshlrev_b32 v3, 13, v3"); a("v_and_b32 v4, 7, v0"); a("v_lshl_add_u32 v3, v4, 4, v3")
    WQ = 64
    for n in range(18):
        a(f"buffer_load_dwordx4 {vr(WQ+4*n,4)}, v3, s[36:39], s42 offen {cfg.WFLAGS}")
        if n < 17: a("s_add_u32 s42, s42, 65536")
    SELX = 16
    pv_selectors(a, SELX, mode="lo", t=(20, 21, 22, 23))
    piece_addr(a, 5, 6)
    a("s_waitcnt vmcnt(18)")
    st.mark(1)
    layernorm(a, X=8, F=24, out=8, tmp=36)
    a(f"v_lshlrev_b32 v2, 2, v0"); a(f"v_add_u32 v2, {LDS_XN}, v2")
    for i in range(5): a(f"ds_write_b32 v2, v{8+i} offset:{256*i}")
    a("s_mul_i32 s42, s41, 288"); a(f"s_add_u32 s42, s42, {LDS_XN}")
    a("v_lshrrev_b32 v2, 3, v0"); a("v_lshlrev_b32 v2, 1, v2"); a("v_add_u32 v2, s42, v2")
    a("s_waitcnt lgkmcnt(0)")
    a("s_add_u32 s24, s24, 1")
    XV = 24
    for n in range(18): a(f"ds_read_u16 v{XV+n}, v2 offset:{16*n}")
    lds_flag_set(a, LDS_F0, 6, 7)
    st.mark(2)
    AX = 44; DQ = 52
    a("s_waitcnt lgkmcnt(0)")
    piece_gemv(a, WQ, XV, SELX, AX, DQ, lambda k: 17 - k)
    a.nop(8)
    fold40(a, [DQ+r for r in range(4)], [56, 57, 58, 59])
    a("s_lshl_b32 s42, s40, 2"); a("s_add_u32 s42, s42, s41"); a("s_lshl_b32 s42, s42, 9"); a(f"s_add_u32 s42, s42, {WS_QP}")
    publish_piece(a, DQ, 60, 42)
    a("s_mov_b32 exec_hi, 0")
    a("buffer_store_dwordx4 v[60:63], v5, s[28:31], s42 offen sc0 sc1")
    a("s_mov_b32 exec_hi, -1")
    lds_flag_set(a, LDS_F1, 6, 7)
    st.mark(3)
    a("s_branch L_gather")

    a.label("L_w5")
    a("s_waitcnt lgkmcnt(0)")
    a("s_add_u32 s24, s24, 1")
    a("s_branch L_gatherwait")

    a.label("L_gatherwait")
    lds_flag_wait(a, LDS_F1, cfg, "gw")
    a.label("L_gather")
    a("s_lshl_b32 s42, s25, 2"); a("s_add_u32 s42, s42, s3"); a("s_sub_u32 s42, s42, 4"); a("s_lshl_b32 s42, s42, 11"); a(f"s_add_u32 s42, s42, {WS_QP}")
    a("v_lshlrev_b32 v2, 3, v0")
    a(f"s_mov_b32 s43, {cfg.SPIN_MAX}")
    a.label("L_gpoll")
    for b in range(4):
        a(f"buffer_load_dwordx2 v[{8+2*b}:{9+2*b}], v2, s[28:31], s42 offen offset:{512*b} sc1")
    a("s_waitcnt vmcnt(0)")
    a("v_cmp_eq_u32 vcc, s24, v9"); a("v_cmp_eq_u32 s[44:45], s24, v11"); a("v_cmp_eq_u32 s[46:47], s24, v13"); a("v_cmp_eq_u32 s[48:49], s24, v15")
    a("s_and_b64 vcc, vcc, s[44:45]"); a("s_and_b64 s[46:47], s[46:47], s[48:49]"); a("s_and_b64 vcc, vcc, s[46:47]")
    a("s_cmp_eq_u64 vcc, -1")
    a("s_cbranch_scc1 L_gdone")
    spin_guard(a, 43, "L_gdone")
    a(f"s_sleep {cfg.GSLEEP}")
    a("s_branch L_gpoll")
    a.label("L_gdone")
    a("v_add_f32 v8, v8, v10"); a("v_add_f32 v8, v8, v12"); a("v_add_f32 v8, v8, v14")
    a("v_cvt_pk_bf16_f32 v8, v8, v8")
    a("s_sub_u32 s42, s3, 4"); a("s_lshl_b32 s42, s42, 7"); a(f"s_add_u32 s42, s42, {LDS_Q}")
    a("v_lshlrev_b32 v2, 1, v0"); a("v_add_u32 v2, s42, v2")
    a("ds_write_b16 v2, v8")
    a("s_waitcnt lgkmcnt(0)")
    st.mark(4)
    a("s_barrier")
    a("s_cmp_eq_u32 s3, 4"); a("s_cbranch_scc1 L_w4b")
    if not cfg.SKIP_FFN:
        a("s_cmp_eq_u32 s3, 5"); a("s_cbranch_scc1 L_ffn2")
    a("s_cmp_eq_u32 s3, 6"); a("s_cbranch_scc1 L_w6")
    st.dump()
    a("s_endpgm")

    a.label("L_w6")
    NS = cfg.NS
    POOL = (32 - NS) * 64
    a(f"v_mov_b32 v2, {LDS_PROG}")
    a(f"s_mov_b32 s43, {cfg.SPIN_MAX}")
    a.label("L_w6poll")
    a("ds_read_b32 v3, v2"); a("s_waitcnt lgkmcnt(0)"); a("v_readfirstlane_b32 s44, v3")
    a(f"s_cmp_ge_u32 s44, {min(NS, 30) - 4}"); a("s_cbranch_scc1 L_w6go")
    spin_guard(a, 43, "L_w6go")
    a("s_sleep 16")
    a("s_branch L_w6poll")
    a.label("L_w6go")
    if cfg.TOUCH:
        a(f"s_cmp_ge_u32 s2, {cfg.TOUCH_WGS}"); a("s_cbranch_scc1 L_w6nt")
        a("s_getpc_b64 s[32:33]")
        a.label("L_pc6")
        a(f"s_sub_u32 s32, s32, L_pc6-{NAME}_kernel"); a("s_subb_u32 s33, s33, 0")
        a("s_and_b32 s33, s33, 0xffff"); a(f"s_mov_b32 s34, L_codeend-{NAME}_kernel"); a("s_mov_b32 s35, 0x20000")
        a("v_lshlrev_b32 v2, 4, v0")
        a("s_mov_b32 s36, 0")
        a.label("L_t6")
        a("buffer_load_dwordx4 v[4:7], v2, s[32:35], s36 offen")
        a("s_add_u32 s36, s36, 1024"); a("s_cmp_lt_u32 s36, s34"); a("s_cbranch_scc1 L_t6")
        a.label("L_w6nt")
    if POOL:
        a("s_lshl_b32 s36, s25, 8"); a(f"s_add_u32 s36, s36, {WS_CNT}")
        a("v_mov_b32 v2, 0")
        a(f"s_mov_b32 s43, {cfg.SPIN_MAX}")
        a.label("L_cntpoll")
        a("buffer_load_dwordx2 v[8:9], v2, s[28:31], s36 offen sc1")
        a("s_waitcnt vmcnt(0)"); a("v_readfirstlane_b32 s44, v9")
        a("s_cmp_eq_u32 s44, s24"); a("s_cbranch_scc1 L_cntok")
        spin_guard(a, 43, "L_cntok")
        a("s_sleep 8"); a("s_branch L_cntpoll")
        a.label("L_cntok")
        a(f"v_lshlrev_b32 v4, 2, v0"); a(f"v_add_u32 v4, {LDS_REQ}, v4")
        a("v_mov_b32 v5, 0")
        a("v_mov_b32 v6, 0")
        a("s_mov_b64 exec, 0xf")
        a(f"s_mov_b32 s43, {cfg.SPIN_MAX * 4}")
        a.label("L_srv")
        a("ds_read_b32 v7, v4"); a("s_waitcnt lgkmcnt(0)")
        a("v_cmp_ne_u32 vcc, v7, v5")
        a("s_cmp_eq_u64 vcc, 0"); a("s_cbranch_scc1 L_srvidle")
        a("s_and_saveexec_b64 s[46:47], vcc")
        a("v_mov_b32 v10, 1")
        a("buffer_atomic_add v10, v2, s[28:31], s36 offen sc0 sc1")
        a("s_waitcnt vmcnt(0)")
        a("v_min_u32 v10, 0xffff, v10")
        a("v_lshl_or_b32 v11, v7, 16, v10")
        a("ds_write_b32 v4, v11 offset:16")
        a("v_mov_b32 v5, v7")
        a(f"v_cmp_le_u32 vcc, {POOL}, v10"); a("s_nop 1"); a("v_cndmask_b32 v6, v6, 1, vcc")
        a("s_mov_b64 exec, s[46:47]")
        a("v_cmp_eq_u32 vcc, 1, v6")
        a("s_cmp_eq_u64 vcc, 0xf"); a("s_cbranch_scc1 L_srvend")
        a("s_branch L_srv")
        a.label("L_srvidle")
        spin_guard(a, 43, "L_srvend")
        a(f"s_sleep {cfg.SRVSLEEP}")
        a("s_branch L_srv")
        a.label("L_srvend")
        a("s_waitcnt lgkmcnt(0)")
    a("s_endpgm")

    a.label("L_ffn2")
    gen_ffn2(a, cfg, st)
    st.dump()
    a("s_endpgm")
    a.label("L_w4b")
    gen_w4b(a, cfg, st)

def gen_ffn2(a, cfg, st):
    a("s_mul_i32 s40, s2, 9363"); a("s_lshr_b32 s40, s40, 16")
    a("s_mul_i32 s41, s40, 7"); a("s_cmp_eq_u32 s41, s2"); a("s_cbranch_scc0 L_ffn_end")
    a("s_cmp_ge_u32 s40, 36"); a("s_cbranch_scc1 L_ffn_end")
    st.mark(5)
    srd(a, 32, 16, 17, 576 * 9216)
    srd(a, 36, 18, 19, 4608 * 1152)
    SEL = 16
    wo_selectors(a, SEL, t=(28, 29, 30, 31))
    FD = cfg.FD
    R = 64
    a("v_lshrrev_b32 v3, 4, v0"); a("v_mul_u32_u24 v3, 9216, v3"); a("v_and_b32 v4, 15, v0"); a("v_lshl_add_u32 v3, v4, 4, v3")
    a("s_lshl_b32 s42, s40, 8")
    for j in range(8):
        a(f"buffer_load_dwordx4 {vr(R+4*j,4)}, v3, s[32:35], s42 offen {cfg.WFLAGS}")
        a(f"s_add_u32 s42, s42, {4*9216}")
    a("v_lshrrev_b32 v2, 4, v0"); a("v_lshlrev_b32 v2, 1, v2"); a(f"v_add_u32 v2, {LDS_XN}, v2")
    DH = 24; XV = 32; AX = 40
    for r in range(4): a(f"v_mov_b32 v{DH+r}, 0")
    a("s_mov_b32 s41, 18")
    a.label("L_f1")
    for j in range(8): a(f"ds_read_u16 v{XV+j}, v2 offset:{8*j}")
    a("v_add_u32 v2, 64, v2")
    a("s_waitcnt lgkmcnt(0)")
    for j in range(8):
        A = AX + 4 * (j & 1)
        for d in range(4): a(f"v_perm_b32 v{A+d}, v{XV+j}, v{XV+j}, v{SEL+d}")
        a("s_waitcnt vmcnt(7)")
        a("s_nop 0")
        a(f"v_mfma_f32_16x16x32_bf16 {vr(DH,4)}, {vr(A,4)}, {vr(R+4*j,4)}, {vr(DH,4)}")
        a(f"buffer_load_dwordx4 {vr(R+4*j,4)}, v3, s[32:35], s42 offen {cfg.WFLAGS}")
        a(f"s_add_u32 s42, s42, {4*9216}")
    a("s_sub_u32 s41, s41, 1"); a("s_cmp_lg_u32 s41, 0"); a("s_cbranch_scc1 L_f1")
    a("s_waitcnt vmcnt(0)")
    a("v_lshrrev_b32 v3, 4, v0"); a("v_mul_u32_u24 v3, 1152, v3"); a("v_and_b32 v4, 15, v0"); a("v_lshl_add_u32 v3, v4, 4, v3")
    a("v_cmp_gt_u32 vcc, 8, v4"); a("v_bfrev_b32 v5, 1"); a("s_nop 0"); a("v_cndmask_b32 v4, v5, v3, vcc")
    a(f"s_mul_i32 s42, s40, {128*1152}")
    for k in range(2):
        for cb in range(5):
            a(f"buffer_load_dwordx4 {vr(R+4*(5*k+cb),4)}, v{3 if cb < 4 else 4}, s[36:39], s42 offen offset:{256*cb} {cfg.WFLAGS}")
        a(f"s_add_u32 s42, s42, {4*1152}")
    a.nop(8)
    a(f"v_cvt_pk_bf16_f32 v48, v{DH}, v{DH+1}"); a(f"v_cvt_pk_bf16_f32 v49, v{DH+2}, v{DH+3}")
    a(f"v_lshlrev_b32 v{DH}, 16, v48"); a(f"v_and_b32 v{DH+1}, 0xffff0000, v48")
    a(f"v_lshlrev_b32 v{DH+2}, 16, v49"); a(f"v_and_b32 v{DH+3}, 0xffff0000, v49")
    for r in range(4): a(f"v_mul_f32 v{52+r}, 0xbfb8aa3b, v{DH+r}")
    for r in range(4): a(f"v_exp_f32 v{52+r}, v{52+r}")
    a("s_nop 0")
    for r in range(4): a(f"v_add_f32 v{52+r}, 1.0, v{52+r}")
    for r in range(4): a(f"v_min_f32 v{52+r}, 0x7e967699, v{52+r}")
    for r in range(4):
        recip(a, 56, 52 + r, 57)
        div_uniform(a, 58, DH + r, 52 + r, 56, 57)
        a(f"v_mov_b32 v{DH+r}, v58")
    a(f"v_cvt_pk_bf16_f32 v48, v{DH}, v{DH+1}"); a(f"v_cvt_pk_bf16_f32 v49, v{DH+2}, v{DH+3}")
    a("v_and_b32 v2, 15, v0"); a("v_lshlrev_b32 v2, 4, v2"); a("v_bfe_u32 v6, v0, 4, 1"); a("v_lshl_add_u32 v2, v6, 3, v2"); a(f"v_add_u32 v2, {LDS_H}, v2")
    a("s_mov_b32 exec_hi, 0")
    a("ds_write_b64 v2, v[48:49]")
    a("s_mov_b32 exec_hi, -1")
    a("s_waitcnt lgkmcnt(0)")
    a("v_lshrrev_b32 v2, 4, v0"); a("v_lshlrev_b32 v2, 1, v2"); a(f"v_add_u32 v2, {LDS_H}, v2")
    ACC = 128
    for r in range(20): a(f"v_mov_b32 v{ACC+r}, 0")
    a("s_mov_b32 s41, 16")
    a.label("L_f2")
    a(f"ds_read_u16 v{XV}, v2"); a(f"ds_read_u16 v{XV+1}, v2 offset:8")
    a("v_add_u32 v2, 16, v2")
    a("s_waitcnt lgkmcnt(0)")
    for k in range(2):
        for d in range(4): a(f"v_perm_b32 v{AX+4*k+d}, v{XV+k}, v{XV+k}, v{SEL+d}")
    a("s_cmp_eq_u32 s41, 1"); a("s_cselect_b32 s38, 0, s38")
    for k in range(2):
        for cb in range(5):
            a("s_waitcnt vmcnt(9)")
            if k == 0 and cb == 0: a("s_nop 0")
            sl = R + 4*(5*k+cb)
            a(f"v_mfma_f32_16x16x32_bf16 {vr(ACC+4*cb,4)}, {vr(AX+4*k,4)}, {vr(sl,4)}, {vr(ACC+4*cb,4)}")
            a(f"buffer_load_dwordx4 {vr(sl,4)}, v{3 if cb < 4 else 4}, s[36:39], s42 offen offset:{256*cb} {cfg.WFLAGS}")
        a(f"s_add_u32 s42, s42, {4*1152}")
    a("s_sub_u32 s41, s41, 1"); a("s_cmp_lg_u32 s41, 0"); a("s_cbranch_scc1 L_f2")
    a("s_waitcnt vmcnt(0)")
    a.nop(8)
    a("v_and_b32 v8, 15, v0"); a("v_lshlrev_b32 v8, 6, v8"); a("v_bfe_u32 v6, v0, 4, 1"); a("v_lshl_add_u32 v8, v6, 5, v8")
    a("v_lshrrev_b32 v6, 5, v0"); a("v_lshl_add_u32 v8, v6, 4, v8")
    a(f"s_mul_i32 s42, s40, 4608"); a(f"s_add_u32 s42, s42, {WS_BP}")
    for cb in range(5):
        Rr = ACC + 4*cb
        S_ = 48 + 4 * (cb & 1)
        a(f"v_permlane32_swap_b32 v{Rr}, v{Rr+2}"); a(f"v_permlane32_swap_b32 v{Rr+1}, v{Rr+3}")
        a("s_nop 0")
        a(f"v_mov_b32 v{S_}, v{Rr}"); a(f"v_mov_b32 v{S_+1}, s24"); a(f"v_mov_b32 v{S_+2}, v{Rr+1}"); a(f"v_mov_b32 v{S_+3}, s24")
        if cb == 4:
            a("s_mov_b32 exec_lo, 0x00ff00ff"); a("s_mov_b32 exec_hi, 0x00ff00ff")
        if not cfg.SKIP_BP: a(f"buffer_store_dwordx4 {vr(S_,4)}, v8, s[28:31], s42 offen sc0 sc1")
        a("s_add_u32 s42, s42, 1024")
    a("s_mov_b64 exec, -1")
    st.mark(6)
    a.label("L_ffn_end")

def final_poll(a, cfg, base_off, PA, name, sleep):
    a(f"s_mov_b32 s43, {cfg.SPIN_MAX}")
    a.label(f"L_{name}poll")
    a(f"s_mov_b32 s51, {base_off}")
    for i in range(16):
        a(f"buffer_load_dwordx4 {vr(PA+4*i,4)}, v25, s[28:31], s51 offen sc1")
        if i < 15: a(f"s_add_u32 s51, s51, {16*4608}")
    a("s_waitcnt vmcnt(0)")
    check_tags(a, [PA+4*i+k for i in range(16) for k in (1, 3)], 27, 26, f"L_{name}done")
    spin_guard(a, 43, f"L_{name}done")
    if sleep: a(f"s_sleep {sleep}")
    a(f"s_branch L_{name}poll")
    a.label(f"L_{name}done")
    a(f"v_add_f32 v44, v{PA}, v{PA+4}"); a(f"v_add_f32 v45, v{PA+2}, v{PA+6}")
    for i in range(2, 16):
        a(f"v_add_f32 v44, v44, v{PA+4*i}"); a(f"v_add_f32 v45, v45, v{PA+4*i+2}")
    allreduce(a, "v_add_f32", [44, 45], [27, 26], rors=(4, 8))

def wo_selectors(a, SEL, t):
    t0, t1, t2, t3 = t
    a(f"v_bfe_u32 v{t3}, v0, 1, 2")
    a(f"v_bfe_u32 v{t2}, v0, 3, 1"); a(f"v_lshl_or_b32 v{t3}, v{t2}, 2, v{t3}")
    a(f"v_and_b32 v{t2}, 1, v0")
    for hi in range(2):
        pair = 0x0302 if hi else 0x0100
        a(f"v_mov_b32 v{t0}, {0x0c0c0000 | pair:#x}"); a(f"v_mov_b32 v{t1}, {(pair << 16) | 0x0c0c:#x}")
        a(f"v_cmp_eq_u32 vcc, 1, v{t2}"); a("s_nop 1")
        a(f"v_cndmask_b32 v{t0}, v{t0}, v{t1}, vcc")
        a(f"v_mov_b32 v{t1}, 0x0c0c0c0c")
        for d in range(4):
            a(f"v_cmp_eq_u32 vcc, {d}, v{t3}"); a("s_nop 1")
            a(f"v_cndmask_b32 v{SEL+4*hi+d}, v{t1}, v{t0}, vcc")

def gen_w4b(a, cfg, st):
    srd(a, 32, 12, 13, 4096 * 1152)
    a("s_lshl_b32 s40, s25, 8"); a("s_lshl_b32 s41, s26, 4"); a("s_add_u32 s40, s40, s41"); a("s_mul_i32 s40, s40, 1152")
    a("v_lshrrev_b32 v3, 4, v0"); a(f"v_mul_u32_u24 v3, {4*1152}, v3"); a("v_and_b32 v4, 15, v0"); a("v_lshl_add_u32 v3, v4, 4, v3")
    a("v_cmp_gt_u32 vcc, 8, v4"); a("v_bfrev_b32 v5, 1"); a("s_nop 0"); a("v_cndmask_b32 v4, v5, v3, vcc")
    WO = 64
    if cfg.SKIP_WO: a("s_mov_b32 s34, 0")
    for rb in range(4):
        for cb in range(5):
            vo = 3 if cb < 4 else 4
            a(f"buffer_load_dwordx4 {vr(WO+4*(rb*5+cb),4)}, v{vo}, s[32:35], s40 offen offset:{256*cb} {cfg.WFLAGS}")
        a(f"s_add_u32 s40, s40, 1152")
    SELW = 16
    wo_selectors(a, SELW, t=(28, 29, 30, 31))
    vML, vO, vAP, vFin, vOst, vMLst, vR = 6, 7, 8, 9, 10, 11, 15
    a("s_lshl_b32 s41, s25, 1"); a("s_lshr_b32 s42, s26, 3"); a("s_add_u32 s41, s41, s42"); a("s_lshl_b32 s41, s41, 8"); a(f"s_add_u32 s41, s41, {WS_ML}")
    a(f"v_and_b32 v{vML}, 15, v0"); a(f"v_lshlrev_b32 v{vML}, 4, v{vML}"); a(f"v_add_u32 v{vML}, s41, v{vML}")
    a("s_lshl_b32 s41, s25, 4"); a("s_add_u32 s41, s41, s26"); a("s_lshl_b32 s41, s41, 11"); a(f"s_add_u32 s41, s41, {WS_OP}")
    a(f"v_and_b32 v{vO}, 15, v0"); a(f"v_lshlrev_b32 v{vO}, 7, v{vO}"); a("v_lshrrev_b32 v24, 4, v0"); a(f"v_lshl_add_u32 v{vO}, v24, 4, v{vO}")
    a(f"v_add_u32 v{vO}, s41, v{vO}")
    a("v_lshrrev_b32 v24, 5, v0"); a("v_lshlrev_b32 v24, 3, v24"); a("v_bfe_u32 v25, v0, 1, 3"); a("v_add_u32 v24, v24, v25")
    a("v_lshlrev_b32 v24, 11, v24")
    a("v_and_b32 v25, 1, v0"); a("v_lshlrev_b32 v25, 5, v25"); a("v_bfe_u32 v26, v0, 4, 1"); a("v_lshl_add_u32 v25, v26, 4, v25")
    a("v_add_u32 v24, v24, v25")
    a("s_lshl_b32 s41, s25, 15"); a("s_lshl_b32 s42, s26, 7"); a("s_add_u32 s41, s41, s42"); a(f"s_add_u32 s41, s41, {WS_OP}")
    a(f"v_add_u32 v{vOst}, s41, v24")
    a("v_lshrrev_b32 v24, 5, v0"); a("v_lshlrev_b32 v24, 8, v24")
    a("s_lshl_b32 s41, s25, 9"); a("s_lshl_b32 s42, s26, 4"); a("s_add_u32 s41, s41, s42"); a(f"s_add_u32 s41, s41, {WS_ML}")
    a(f"v_add_u32 v{vMLst}, s41, v24")
    a(f"v_lshlrev_b32 v{vR}, 4, v0")
    a(f"v_and_b32 v{vAP}, 15, v0"); a(f"v_lshlrev_b32 v{vAP}, 6, v{vAP}"); a("v_bfe_u32 v24, v0, 4, 1"); a(f"v_lshl_add_u32 v{vAP}, v24, 5, v{vAP}")
    a("v_lshrrev_b32 v24, 5, v0"); a(f"v_lshl_add_u32 v{vAP}, v24, 4, v{vAP}")
    a("s_mul_i32 s41, s2, 4608"); a(f"s_add_u32 s41, s41, {WS_AP}"); a(f"v_add_u32 v{vAP}, s41, v{vAP}")
    BS0, BS1, XC = 12, 13, 14
    a("s_sub_u32 s50, s2, 184")
    a("v_and_b32 v24, 3, v0"); a("v_lshlrev_b32 v24, 2, v24"); a("s_lshl_b32 s51, s50, 4"); a("v_add_u32 v24, s51, v24")
    a(f"v_mov_b32 v{vFin}, v24")
    a("v_lshrrev_b32 v25, 2, v0"); a("v_mul_u32_u24 v25, 4608, v25"); a("v_and_b32 v26, 3, v0"); a("v_lshl_add_u32 v25, v26, 4, v25")
    a("s_lshl_b32 s51, s50, 6"); a("v_add_u32 v25, s51, v25")
    a("s_cmp_lt_u32 s2, 184")
    a("s_cbranch_scc1 L_nofin1")
    srd(a, 36, 4, 5, 1152)
    a(f"buffer_load_dword v{XC}, v24, s[36:39], 0 offen")
    a(f"v_mov_b32 v26, {LDS_PROG}")
    a(f"s_mov_b32 s43, {cfg.SPIN_MAX}")
    a.label("L_bwait")
    a("ds_read_b32 v27, v26"); a("s_waitcnt lgkmcnt(0)"); a("v_readfirstlane_b32 s44, v27")
    a(f"s_cmp_ge_u32 s44, {cfg.BWAIT}"); a("s_cbranch_scc1 L_bgo")
    spin_guard(a, 43, "L_bgo")
    a("s_sleep 32")
    a("s_branch L_bwait")
    a.label("L_bgo")
    if cfg.SKIP_FFN or cfg.SKIP_BP:
        a("v_mov_b32 v44, 0"); a("v_mov_b32 v45, 0")
    else:
        PB = 160
        a(f"v_mov_b32 v{PB+8}, 0"); a(f"v_mov_b32 v{PB+9}, s24"); a(f"v_mov_b32 v{PB+10}, 0"); a(f"v_mov_b32 v{PB+11}, s24")
        a(f"s_mov_b32 s43, {cfg.SPIN_MAX}")
        a.label("L_bpoll")
        a(f"s_mov_b32 s51, {WS_BP}")
        for i in range(3):
            if i == 2: a("s_mov_b64 exec, 0xffff")
            a(f"buffer_load_dwordx4 {vr(PB+4*i,4)}, v25, s[28:31], s51 offen sc1")
            if i < 2: a(f"s_add_u32 s51, s51, {16*4608}")
        a("s_mov_b64 exec, -1")
        a("s_waitcnt vmcnt(0)")
        check_tags(a, [PB+4*i+k for i in range(3) for k in (1, 3)], 27, 26, "L_bdone")
        spin_guard(a, 43, "L_bdone")
        a("s_sleep 64")
        a("s_branch L_bpoll")
        a.label("L_bdone")
        a(f"v_add_f32 v44, v{PB}, v{PB+4}"); a(f"v_add_f32 v45, v{PB+2}, v{PB+6}")
        a(f"v_add_f32 v44, v44, v{PB+8}"); a(f"v_add_f32 v45, v45, v{PB+10}")
        allreduce(a, "v_add_f32", [44, 45], [27, 26], rors=(4, 8))
    a("v_cvt_pk_bf16_f32 v27, v44, v45")
    a(f"v_lshlrev_b32 v{BS0}, 16, v27"); a(f"v_and_b32 v{BS1}, 0xffff0000, v27")
    a.label("L_nofin1")
    srd(a, 36, 20, 21, 1152)
    a("s_mov_b32 s46, 0"); a("s_mov_b32 s47, -1")
    a("s_waitcnt vmcnt(0)")
    st.mark(5)
    a("s_barrier")
    a.label("L_tail")
    st.mark(6)
    RO = 160
    RM = 176
    for w in range(4):
        a(f"ds_read_b128 {vr(RO+4*w,4)}, v{vR} offset:{2048*w}")
    a("v_mov_b32 v24, 0")
    for w in range(4):
        a(f"ds_read_b128 {vr(RM+4*w,4)}, v24 offset:{2048*w+1024}")
    a("s_waitcnt lgkmcnt(0)")
    for w in range(4):
        a(f"v_cndmask_b32 v{28+w}, v{RM+4*w}, v{RM+4*w+1}, s[46:47]")
        a(f"v_cndmask_b32 v{32+w}, v{RM+4*w+2}, v{RM+4*w+3}, s[46:47]")
    a("v_max_f32 v36, v28, v29"); a("v_max3_f32 v36, v36, v30, v31")
    for w in range(4): a(f"v_sub_f32 v{28+w}, v{28+w}, v36")
    for w in range(4): a(f"v_mul_f32 v{28+w}, {LOG2E:#x}, v{28+w}")
    for w in range(4): a(f"v_exp_f32 v{28+w}, v{28+w}")
    a("s_nop 0")
    S = 40
    for r in range(4):
        dst = S + 2*r
        a(f"v_mul_f32 v{dst}, v28, v{RO+r}")
        for w in range(1, 4): a(f"v_fma_f32 v{dst}, v{28+w}, v{RO+4*w+r}, v{dst}")
        a(f"v_mov_b32 v{dst+1}, s24")
    a(f"buffer_store_dwordx4 {vr(S,4)}, v{vOst}, s[28:31], 0 offen sc0 sc1")
    a(f"buffer_store_dwordx4 {vr(S+4,4)}, v{vOst}, s[28:31], 0 offen offset:64 sc0 sc1")
    a("v_mul_f32 v50, v28, v32")
    for w in range(1, 4): a(f"v_fma_f32 v50, v{28+w}, v{32+w}, v50")
    a("v_mov_b32 v48, v36"); a("v_mov_b32 v49, s24"); a("v_mov_b32 v51, s24")
    a("s_mov_b32 exec_lo, 1"); a("s_mov_b32 exec_hi, 1")
    a(f"buffer_store_dwordx4 v[48:51], v{vMLst}, s[28:31], 0 offen sc0 sc1")
    a("s_mov_b64 exec, -1")
    st.mark(7)
    ML = 160; OD = 164
    a(f"s_mov_b32 s43, {cfg.SPIN_MAX}")
    a.label("L_mlpoll")
    a(f"buffer_load_dwordx4 {vr(ML,4)}, v{vML}, s[28:31], 0 offen sc1")
    a(f"buffer_load_dwordx4 {vr(OD,4)}, v{vO}, s[28:31], 0 offen sc1")
    a(f"buffer_load_dwordx4 {vr(OD+4,4)}, v{vO}, s[28:31], 0 offen offset:64 sc1")
    a("s_waitcnt vmcnt(0)")
    check_tags(a, [ML+1, ML+3, OD+1, OD+3, OD+5, OD+7], 27, 28, "L_mldone")
    spin_guard(a, 43, "L_mldone")
    a(f"s_sleep {cfg.MLSLEEP}")
    a("s_branch L_mlpoll")
    a.label("L_mldone")
    st.mark(8)
    a(f"v_mov_b32 v30, v{ML}")
    allreduce(a, "v_max_f32", [30], [31], cross=False)
    a(f"v_sub_f32 v30, v{ML}, v30"); a(f"v_mul_f32 v30, {LOG2E:#x}, v30"); a("v_exp_f32 v30, v30")
    a("s_nop 0")
    a(f"v_mul_f32 v32, v30, v{ML+2}")
    a(f"v_mul_f32 v33, v30, v{OD}"); a(f"v_mul_f32 v34, v30, v{OD+2}"); a(f"v_mul_f32 v35, v30, v{OD+4}"); a(f"v_mul_f32 v36, v30, v{OD+6}")
    allreduce(a, "v_add_f32", [32, 33, 34, 35, 36], None, cross=False)
    recip(a, 37, 32, 31)
    for r in (33, 34, 35, 36):
        a(f"v_mul_f32 v38, v{r}, v37"); a(f"v_fma_f32 v31, -v38, v32, v{r}"); a(f"v_fma_f32 v{r}, v31, v37, v38")
    a("v_cvt_pk_bf16_f32 v44, v33, v34"); a("v_cvt_pk_bf16_f32 v45, v35, v36")
    AW = 48; ACC = 200
    for rb in range(4):
        src = 44 + (rb >> 1)
        for d in range(4): a(f"v_perm_b32 v{AW+4*rb+d}, v{src}, v{src}, v{SELW+4*(rb&1)+d}")
    ST = 224
    for k in range(3):
        a(f"v_mov_b32 v{ST+4*k+1}, s24"); a(f"v_mov_b32 v{ST+4*k+3}, s24")
    def mf(cb):
        for rb in range(4):
            a(f"v_mfma_f32_16x16x32_bf16 {vr(ACC+4*cb,4)}, {vr(AW+4*rb,4)}, {vr(WO+4*(rb*5+cb),4)}, {'0' if rb == 0 else vr(ACC+4*cb,4)}")
    def stre(cb):
        R = ACC + 4*cb
        S_ = ST + 4 * (cb % 3)
        a(f"v_permlane32_swap_b32 v{R}, v{R+2}"); a(f"v_permlane32_swap_b32 v{R+1}, v{R+3}")
        a("s_nop 0")
        a(f"v_mov_b32 v{S_}, v{R}"); a(f"v_mov_b32 v{S_+2}, v{R+1}")
        if cb == 4:
            a("s_mov_b32 exec_lo, 0x00ff00ff"); a("s_mov_b32 exec_hi, 0x00ff00ff")
        off = 1024 * cb
        if off < 4096:
            a(f"buffer_store_dwordx4 {vr(S_,4)}, v{vAP}, s[28:31], 0 offen offset:{off} sc0 sc1")
        else:
            a("s_movk_i32 s41, 0x1000")
            a(f"buffer_store_dwordx4 {vr(S_,4)}, v{vAP}, s[28:31], s41 offen sc0 sc1")
    mf(0); mf(1); mf(2)
    stre(0)
    mf(3)
    stre(1)
    mf(4)
    stre(2)
    a.nop(4)
    stre(3)
    a.nop(4)
    stre(4)
    a("s_mov_b64 exec, -1")
    st.mark(9)
    a("s_cmp_lt_u32 s2, 184")
    a("s_cbranch_scc1 L_w4end")
    a("s_barrier")
    a(f"v_and_b32 v24, 3, v0"); a(f"v_lshlrev_b32 v24, 3, v24"); a(f"v_add_u32 v24, {LDS_FIN}, v24")
    a(f"v_lshlrev_b32 v47, 16, v{XC}"); a(f"v_and_b32 v48, 0xffff0000, v{XC}")
    a("s_barrier")
    st.mark(10)
    for w in range(4): a(f"ds_read_b64 v[{52+2*w}:{53+2*w}], v24 offset:{32*w}")
    a("s_waitcnt lgkmcnt(0)")
    a("v_add_f32 v44, v52, v54"); a("v_add_f32 v45, v53, v55")
    a("v_add_f32 v44, v44, v56"); a("v_add_f32 v45, v45, v57")
    a("v_add_f32 v44, v44, v58"); a("v_add_f32 v45, v45, v59")
    a("v_cvt_pk_bf16_f32 v46, v44, v45")
    a("v_lshlrev_b32 v44, 16, v46"); a("v_and_b32 v45, 0xffff0000, v46")
    a("v_add_f32 v44, v47, v44"); a("v_add_f32 v45, v48, v45")
    a("v_cvt_pk_bf16_f32 v46, v44, v45")
    a("v_lshlrev_b32 v44, 16, v46"); a("v_and_b32 v45, 0xffff0000, v46")
    a(f"v_add_f32 v44, v44, v{BS0}"); a(f"v_add_f32 v45, v45, v{BS1}")
    a("v_cvt_pk_bf16_f32 v46, v44, v45")
    a("s_mov_b64 exec, 0xf")
    a(f"buffer_store_dword v46, v{vFin}, s[36:39], 0 offen")
    a("s_cmp_eq_u32 s50, 0")
    a("s_cbranch_scc0 L_noE")
    a("s_mov_b64 exec, 1")
    a("v_mov_b32 v47, s24"); a(f"v_mov_b32 v48, {WS_E}")
    a("buffer_store_dword v47, v48, s[28:31], 0 offen sc0 sc1")
    a.label("L_noE")
    a("s_mov_b64 exec, -1")
    st.mark(11)
    a.label("L_w4end")
    st.dump()
    a("s_endpgm")

if __name__ == "__main__":
    import argparse
    ap = argparse.ArgumentParser()
    ap.add_argument("-o", default="out.s")
    ap.add_argument("--set", action="append", default=[])
    args = ap.parse_args()
    cfg = Cfg()
    for kv in args.set:
        k, v = kv.split("=", 1)
        old = getattr(cfg, k)
        if isinstance(old, bool): v = v in ("1", "True", "true")
        elif isinstance(old, int): v = int(v, 0)
        setattr(cfg, k, v)
    open(args.o, "w").write(gen(cfg))
```
